```python
import torch

def _softmax(x, axis=-1):
    return torch.softmax(x, dim=axis)
def _gelu(x):
    return torch.nn.functional.gelu(x, approximate="tanh")
def _silu(x):
    return torch.nn.functional.silu(x)
def _sigmoid(x):
    return torch.sigmoid(x)
def _layernorm(x, axis=-1, eps=1e-5):
    m = x.mean(dim=axis, keepdim=True)
    v = x.var(dim=axis, keepdim=True, unbiased=False)
    return (x - m) / torch.sqrt(v + eps)
def _scatter_add(tgt, idx, src, axis=0):
    return tgt.clone().index_add_(axis, idx, src)
def _segment_sum(src, seg, n):
    out = torch.zeros((n,) + src.shape[1:], dtype=src.dtype)
    return out.index_add_(0, seg, src)
def _pad(x, pw):
    flat = tuple(v for pair in reversed(pw) for v in pair)
    return torch.nn.functional.pad(x, flat)

kernel_name = 'sequential_preLN__sliding_block_cached__glu_gated_reglu__decode'

def setup_inputs():

    _w = (lambda a: (lambda t: t.to(torch.bfloat16) if t.is_floating_point() else t)(torch.as_tensor(a)))
    def _A_setup():
        B, Sq, D = 1, 1, 1024
        Hq, Hkv, Sk, Dh = 32, 4, 65536, 128
        assert Hq % Hkv == 0, (Hq, Hkv)
        return {
            "x": _w((lambda *s: torch.randn(*s, dtype=torch.bfloat16) * 0.05)(B, Sq, D)),
            "k_cache": _w((lambda *s: torch.randn(*s, dtype=torch.bfloat16) * 1.6)(B, Hkv, Sk, Dh)),
            "v_cache": _w((lambda *s: torch.randn(*s, dtype=torch.bfloat16) * 0.8)(B, Hkv, Sk, Dh)),
            "wq": _w((lambda *s: torch.randn(*s, dtype=torch.bfloat16) * 1.6)(D, Hq * Dh) * (D ** -0.5)),
            "wo": _w((lambda *s: torch.randn(*s, dtype=torch.bfloat16) * 0.8)(Hq * Dh, D) * ((Hq * Dh) ** -0.5)),
        }
    _A_in = _A_setup()

    def _B_setup():
        B, S, D, F = 1, 1, 1024, 3584
        return {
            "x": _w((lambda *s: torch.randn(*s, dtype=torch.bfloat16) * 0.05)(B, S, D)),
            "W_gate": _w((lambda *s: torch.randn(*s, dtype=torch.bfloat16) * 0.4)(D, F) * (2.0 / D) ** 0.5),
            "W_up": _w((lambda *s: torch.randn(*s, dtype=torch.bfloat16) * 0.4)(D, F) * (2.0 / D) ** 0.5),
            "W_down": _w((lambda *s: torch.randn(*s, dtype=torch.bfloat16) * 0.4)(F, D) * (1.0 / F) ** 0.5),
        }
    _B_in = _B_setup()

    return {
        "A_x": _A_in["x"],
        "A_k_cache": _A_in["k_cache"],
        "A_v_cache": _A_in["v_cache"],
        "A_wq": _A_in["wq"],
        "A_wo": _A_in["wo"],
        "B_x": _B_in["x"],
        "B_W_gate": _B_in["W_gate"],
        "B_W_up": _B_in["W_up"],
        "B_W_down": _B_in["W_down"],
    }

def reference(A_x, A_k_cache, A_v_cache, A_wq, A_wo, B_x, B_W_gate, B_W_up, B_W_down):
    def _A_ref(x, k_cache, v_cache, wq, wo):
        B, Sq, D = x.shape
        Hq, Dh = 32, 128
        Hkv, Sk = k_cache.shape[1], k_cache.shape[2]
        W = min(4096, max(256, Sk // 4))
        rep = Hq // Hkv
        q = (lambda x, *d: x.permute(*d))((x @ wq).reshape(B, Sq, Hq, Dh), 0, 2, 1, 3)
        k = (lambda x, n, axis: torch.repeat_interleave(x, n, dim=axis))(k_cache[:, :, Sk - W:, :], rep, axis=1)
        v = (lambda x, n, axis: torch.repeat_interleave(x, n, dim=axis))(v_cache[:, :, Sk - W:, :], rep, axis=1)
        scores = torch.einsum("bhqd,bhkd->bhqk", q, k) * (Dh ** -0.5)
        p = _softmax(scores, axis=-1)
        o = torch.einsum("bhqk,bhkd->bhqd", p, v)
        return (lambda x, *d: x.permute(*d))(o, 0, 2, 1, 3).reshape(B, Sq, Hq * Dh) @ wo

    def _B_ref(x, W_gate, W_up, W_down):
        gate = torch.einsum("bsd,df->bsf", x, W_gate)
        up = torch.einsum("bsd,df->bsf", x, W_up)
        gate = gate * (lambda x, dt: x.to(dt))(gate > 0, gate.dtype)
        h = gate * up
        return torch.einsum("bsf,fd->bsd", h, W_down)

    x = A_x
    h = x + _A_ref(_layernorm(x, axis=-1), A_k_cache, A_v_cache, A_wq, A_wo)
    h2 = h + _B_ref(_layernorm(h, axis=-1), B_W_gate, B_W_up, B_W_down)
    return h2
```

```python
import sys
KNAME = "sequential_preLN__sliding_block_cached__glu_gated_reglu__decode_kernel"

HDR = """; Kernarg layout for this problem (96 bytes, ptrs only, base s[0:1]):
"""

WS_EPOCH = 0x0
WS_QP   = 0x10000
WS_ML   = 0x20000
WS_ST   = 0x28000
WS_HB   = 0x29000
WS_OP   = 0x100000
WS_WP   = 0x200000
WS_GP   = 0x280000
WS_DP   = 0x480000
WS_PROF = 0x800000

L_V    = 0
L_RED  = 16384
L_JUNK = 18432
L_Q    = 19456
L_P    = 21760
L_ML   = 23040
L_RED2 = 23552
LDS_BYTES = 98304

class Gen:
    def __init__(self, prof=False, sched=None, spin=1<<16, sleep_retry=2, gates=None):
        self.l = []
        self.prof = prof
        self.vnext = 1
        self.vn = {}
        self.vm = []
        self.nstamp = 0
        self.lab = 0
        self.spin = spin
        self.sleep_retry = sleep_retry
        self.sched = sched or {}
        self.gates = gates or {}
    def e(self, s):
        for x in s.strip("\n").split("\n"):
            self.l.append(x)
    def label(self, base):
        self.lab += 1
        return f"L_{base}_{self.lab}"
    def va(self, name, n=1, align=1):
        if n >= 2 and align < 2: align = 2
        if n >= 4: align = max(align, 4)
        p = (self.vnext + align - 1)//align*align
        self.vn[name] = (p, n)
        self.vnext = p + n
        assert self.vnext <= 256, "out of vgprs"
        return p
    def v(self, name, i=0, n=1):
        p, cnt = self.vn[name]
        assert i + n <= cnt, (name, i, n, cnt)
        if n == 1: return f"v{p+i}"
        return f"v[{p+i}:{p+i+n-1}]"
    def vmem(self, txt, tag):
        self.e(txt); self.vm.append(tag)
    def wait(self, tag, extra=""):
        idx = max(i for i, t in enumerate(self.vm) if t == tag)
        n = len(self.vm) - 1 - idx
        assert n <= 63
        self.e(f"  s_waitcnt vmcnt({n}){extra}")
    def stamp(self, name):
        if not self.prof: return
        k = self.nstamp; self.nstamp += 1
        assert k < 16
        self.e(f"  s_memrealtime s[{64+2*k}:{65+2*k}]")
        self.stamps.append(name)

    def bf16r(self, dst, src, tmp=None):
        self.e(f"  v_cvt_pk_bf16_f32 {dst}, {src}, {src}")
        self.e(f"  v_and_b32 {dst}, sMASKHI, {dst}".replace("sMASKHI", "s60"))
    def allred16(self, op, v):
        for m in ("quad_perm:[1,0,3,2]", "quad_perm:[2,3,0,1]", "row_half_mirror", "row_mirror"):
            self.e("  s_nop 1")
            self.e(f"  {op}_dpp {v}, {v}, {v} {m} row_mask:0xf bank_mask:0xf")
    def allred_rows(self, op, v, t, which=(16, 32)):
        for k in which:
            self.e(f"  v_mov_b32 {t}, {v}")
            self.e("  s_nop 1")
            self.e(f"  v_permlane{k}_swap_b32 {v}, {t}")
            self.e(f"  {op} {v}, {v}, {t}")
    def allred64(self, op, v, t):
        self.allred16(op, v)
        self.allred_rows(op, v, t)
    def scatter4(self, a):
        self.e("  s_nop 1")
        self.e(f"  v_permlane32_swap_b32 {a[0]}, {a[2]}")
        self.e(f"  v_permlane32_swap_b32 {a[1]}, {a[3]}")
        self.e(f"  v_add_f32 {a[0]}, {a[0]}, {a[2]}")
        self.e(f"  v_add_f32 {a[1]}, {a[1]}, {a[3]}")
        self.e("  s_nop 1")
        self.e(f"  v_permlane16_swap_b32 {a[0]}, {a[1]}")
        self.e(f"  v_add_f32 {a[0]}, {a[0]}, {a[1]}")
    def build_A(self, dst, P, par):
        name, off = dst
        for d in range(4):
            self.e(f"  v_perm_b32 {self.v(name, off+d)}, {P}, {P}, {self.v('sel', 2*d+par)}")
    def check_tags(self, regs, bad, first=True):
        for k, (name, off) in enumerate(regs):
            g = [self.v(name, off+i) for i in range(4)]
            t = self.v('t0'); u = self.v('t1')
            self.e(f"  v_perm_b32 {t}, {g[1]}, {g[0]}, s58")
            self.e(f"  v_perm_b32 {u}, {g[3]}, {g[2]}, s58")
            self.e(f"  v_sad_u8 {bad}, {t}, s57, {'0' if (first and k == 0) else bad}")
            self.e(f"  v_sad_u8 {bad}, {u}, s57, {bad}")
    def poll(self, name, loads, granules, after_first=None):
        g = self.gates.get(name)
        if g: self.e(f"  s_sleep {g}")
        for s in loads: self.vmem(s, name)
        tagname = name
        if after_first: after_first()
        self.wait(tagname)
        bad = self.v('bad')
        ok = self.label("ok"); rt = self.label("retry")
        self.check_tags(granules, bad)
        self.e(f"  v_cmp_ne_u32 vcc, 0, {bad}")
        self.e(f"  s_cbranch_vccz {ok}")
        self.e(f"{rt}:")
        self.e(f"  s_sub_u32 s61, s61, 1")
        self.e(f"  s_cbranch_scc1 L_END")
        if self.sleep_retry: self.e(f"  s_sleep {self.sleep_retry}")
        for s in loads: self.e(s)
        self.e("  s_waitcnt vmcnt(0)")
        self.check_tags(granules, bad)
        self.e(f"  v_cmp_ne_u32 vcc, 0, {bad}")
        self.e(f"  s_cbranch_vccnz {rt}")
        self.e(f"{ok}:")
    def mask(self, name, off, n):
        for i in range(n):
            r = self.v(name, off+i)
            self.e(f"  v_and_b32 {r}, s59, {r}")
    def tag(self, name, off, n=4):
        for i in range(n):
            r = self.v(name, off+i)
            self.e(f"  v_bfi_b32 {r}, s56, {self.v('tag')}, {r}")

    def init_prefetch(self):
        q = []
        for t in range(8):
            q.append(("wo", f"  buffer_load_dwordx4 {self.v('WO', 4*t, 4)}, {self.v('offWO')}, s[20:23], s48 offen nt", "s48", 2048))
        for t in range(8):
            for a in range(2):
                q.append(("gu", f"  buffer_load_dwordx4 {self.v('GU', 8*t+4*a, 4)}, {self.v('offGU')}, s[24:27], s49 offen offset:{256*a} nt", "s49" if a == 1 else None, 7168))
        for t in range(4):
            for a in range(2):
                q.append(("wd", f"  buffer_load_dwordx4 {self.v('WD', 8*t+4*a, 4)}, {self.v('offWD')}, s[28:31], s50 offen offset:{256*a} nt", "s50" if a == 1 else None, 2048))
        self.pq = q; self.pqi = 0
    def prefetch(self, point):
        n = self.sched.get(point, 0)
        self.prefetch_n(n)
    def prefetch_n(self, n, guard=True):
        for _ in range(n):
            if self.pqi >= len(self.pq): return
            tag, txt, sreg, step = self.pq[self.pqi]; self.pqi += 1
            self.vmem(txt, tag)
            if sreg: self.e(f"  s_add_u32 {sreg}, {sreg}, {step}")
    def prefetch_until(self, tag):
        while any(t == tag for (t, _, _, _) in self.pq[self.pqi:]):
            self.prefetch_n(1)

    def build(self):
        e = self.e; v = self.v; va = self.va
        self.stamps = []
        va('lane'); va('t0'); va('t1'); va('t2'); va('t3'); va('bad'); va('tag'); va('l16')
        va('offWO'); va('offGU'); va('offWD'); va('offQ'); va('offK'); va('offVa'); va('offVb')
        va('sel', 8); va('A', 8, 4); va('D', 8, 4); va('G', 16, 4); va('GL', 4, 4); va('P', 4, 4); va('XH', 4, 4)
        va('WQ', 32, 4); va('K', 16, 4); va('WO', 32, 4); va('GU', 64, 4)
        self.vn['WD'] = self.vn['WQ']
        va('F', 16, 4)
        va('a1'); va('a2'); va('a3'); va('a4'); va('a5'); va('a6'); va('a7'); va('a8')
        self.init_prefetch()
        lane = v('lane'); t0 = v('t0'); t1 = v('t1'); t2 = v('t2'); t3 = v('t3')
        e(f"{KNAME}:")
        if self.prof: e("  s_memrealtime s[62:63]")
        e(f"""
  s_cmp_ge_u32 s2, 256
  s_cbranch_scc1 L_END
  s_load_dwordx2 s[8:9], s[0:1], 24      ; wq
  s_load_dwordx2 s[32:33], s[0:1], 0     ; x
  s_load_dwordx2 s[12:13], s[0:1], 8     ; K
  s_load_dwordx2 s[16:17], s[0:1], 16    ; V
  s_load_dwordx2 s[40:41], s[0:1], 88    ; ws
  s_load_dwordx2 s[20:21], s[0:1], 32    ; wo
  v_and_b32 {lane}, 63, v0
  v_lshrrev_b32 {t0}, 6, v0
  s_mov_b32 s10, 0x800000
  s_mov_b32 s11, 0x20000
  v_readfirstlane_b32 s3, {t0}
  s_mov_b32 s34, 2048
  s_mov_b32 s35, 0x20000
  s_mov_b32 s14, 0x4000000
  s_mov_b32 s15, 0x20000
  s_mov_b32 s18, 0x4000000
  s_mov_b32 s19, 0x20000
  s_mov_b32 s42, 0x10000000
  s_mov_b32 s43, 0x20000
  s_mov_b32 s22, 0x800000
  s_mov_b32 s23, 0x20000
  s_lshr_b32 s4, s2, 6
  s_and_b32 s5, s2, 63
  s_lshl_b32 s6, s4, 8                   ; ks*256
  s_lshl_b32 s7, s3, 6                   ; w*64
  s_add_u32 s6, s6, s7
  s_lshl_b32 s52, s6, 1
  s_lshl_b32 s6, s6, 13                  ; *8192
  s_lshl_b32 s7, s5, 7
  s_add_u32 s53, s6, s7
  v_lshrrev_b32 {t0}, 3, {lane}          ; l>>3
  v_and_b32 {t1}, 7, {lane}              ; l&7
  v_lshlrev_b32 {v('offQ')}, 16, {t0}    ; (l>>3)*8*8192
  v_lshl_add_u32 {v('offQ')}, {t1}, 4, {v('offQ')}
  v_lshlrev_b32 {t2}, 4, {t0}
  v_lshlrev_b32 {t3}, 5, {lane}          ; l*32
  s_waitcnt lgkmcnt(0)
""")
        self.vmem(f"  buffer_load_dwordx4 {v('G',0,4)}, {t3}, s[32:35], 0 offen", "x")
        self.vmem(f"  buffer_load_dwordx4 {v('G',4,4)}, {t3}, s[32:35], 0 offen offset:16", "x")
        self.vmem(f"  buffer_load_dwordx4 {v('P',0,4)}, {t2}, s[32:35], s52 offen", "x")
        for t in range(8):
            self.vmem(f"  buffer_load_dwordx4 {v('WQ',4*t,4)}, {v('offQ')}, s[8:11], s53 offen nt", "wq")
            if t < 7: e("  s_add_u32 s53, s53, 8192")
        e(f"""
  s_load_dwordx4 s[44:47], s[0:1], 48
  s_load_dwordx2 s[28:29], s[0:1], 64    ; wd
  s_load_dwordx2 s[36:37], s[0:1], 72    ; out
  s_load_dword s54, s[40:41], 0          ; epoch
  s_and_b32 s4, s2, 7
  s_lshr_b32 s4, s4, 1                   ; g
  s_lshr_b32 s5, s2, 3
  s_lshl_b32 s5, s5, 1
  s_and_b32 s6, s2, 1
  s_add_u32 s55, s5, s6                  ; split s (0..63)
  s_mov_b32 s62, s4
""" if not self.prof else f"""
  s_load_dwordx4 s[44:47], s[0:1], 48
  s_load_dwordx2 s[28:29], s[0:1], 64    ; wd
  s_load_dwordx2 s[36:37], s[0:1], 72    ; out
  s_load_dword s54, s[40:41], 0          ; epoch
  s_and_b32 s4, s2, 7
  s_lshr_b32 s4, s4, 1                   ; g
  s_lshr_b32 s5, s2, 3
  s_lshl_b32 s5, s5, 1
  s_and_b32 s6, s2, 1
  s_add_u32 s55, s5, s6                  ; split s (0..63)
""")
        e(f"""
  s_mov_b32 s96, s4                      ; g
  s_lshl_b32 s6, s4, 24                  ; g*16MB
  s_lshl_b32 s7, s55, 6                  ; s*64
  s_lshl_b32 s5, s3, 4                   ; w*16
  s_add_u32 s7, s7, s5
  s_add_u32 s7, s7, 61440
  s_lshl_b32 s7, s7, 8
  s_add_u32 s97, s6, s7
  v_and_b32 {t0}, 15, {lane}             ; l&15
  v_lshrrev_b32 {t1}, 4, {lane}          ; l>>4
  v_lshlrev_b32 {v('offK')}, 8, {t0}
  v_lshl_add_u32 {v('offK')}, {t1}, 4, {v('offK')}
  v_lshlrev_b32 {t2}, 1, {t1}            ; 2r
  v_xor_b32 {t2}, {t2}, {t0}             ; (l&15) ^ 2r
  v_lshlrev_b32 {t2}, 4, {t2}
  v_lshl_add_u32 {v('offVa')}, {t1}, 8, {t2}
  v_xor_b32 {v('offVb')}, 128, {v('offVa')}
""")
        for u in range(4):
            self.vmem(f"  buffer_load_dwordx4 {v('K',4*u,4)}, {v('offK')}, s[12:15], s97 offen offset:{64*u} nt", "k")
        e(f"  s_lshl_b32 s5, s3, 12")
        for t in range(4):
            e(f"  s_add_u32 s6, s5, {L_V + 1024*t}\n  s_mov_b32 m0, s6\n  s_add_u32 s7, s97, {1024*t}")
            self.vmem(f"  buffer_load_dwordx4 {v('offVa') if t < 2 else v('offVb')}, s[16:19], s7 offen nt lds", "v")
        e(f"""
  v_lshlrev_b32 {v('l16')}, 4, {lane}
  v_lshlrev_b32 {t2}, 4, {t0}
  v_lshl_add_u32 {v('offWO')}, {t1}, 14, {t2}
  v_lshl_add_u32 {v('offWD')}, {t1}, 13, {t2}
  v_mul_u32_u24 {t3}, 57344, {t1}
  v_add_u32 {v('offGU')}, {t3}, {t2}
  ; selectors: e = l&7
  v_and_b32 {t0}, 7, {lane}
  v_lshrrev_b32 {t1}, 1, {t0}            ; e>>1
  v_and_b32 {t2}, 1, {t0}                ; e&1
  v_mov_b32 {v('a1')}, 0x0c0c0100
  v_mov_b32 {v('a2')}, 0x01000c0c
  v_mov_b32 {v('a3')}, 0x0c0c0302
  v_mov_b32 {v('a4')}, 0x03020c0c
  v_cmp_eq_u32 vcc, 1, {t2}
  s_mov_b32 s56, 0xff
  s_mov_b32 s58, 0x04000400
  v_cndmask_b32 {v('a1')}, {v('a1')}, {v('a2')}, vcc
  v_cndmask_b32 {v('a3')}, {v('a3')}, {v('a4')}, vcc
  v_mov_b32 {v('a2')}, 0x0c0c0c0c
  s_mov_b32 s59, 0xffffff00
  s_mov_b32 s60, 0xffff0000
  s_mov_b32 s61, {self.spin}
""")
        for d in range(4):
            e(f"  v_cmp_eq_u32 vcc, {d}, {t1}\n  s_nop 1\n  v_cndmask_b32 {v('sel',2*d)}, {v('a2')}, {v('a1')}, vcc\n  v_cndmask_b32 {v('sel',2*d+1)}, {v('a2')}, {v('a3')}, vcc")
        e(f"""
  s_waitcnt lgkmcnt(0)
  s_add_u32 s54, s54, 1
  s_and_b32 s4, s54, 0xff
  v_mov_b32 {v('tag')}, s4
  s_mul_i32 s57, s4, 0x01010101
  s_mov_b32 s38, 2048
  s_mov_b32 s39, 0x20000
  s_lshr_b32 s4, s2, 4
  s_lshl_b32 s4, s4, 3
  s_and_b32 s5, s2, 7
  s_add_u32 s98, s4, s5                  ; p
  s_lshr_b32 s5, s2, 3
  s_and_b32 s99, s5, 1                   ; ch
  s_lshl_b32 s4, s98, 16                 ; p*32*2048
  s_lshl_b32 s5, s99, 10                 ; ch*512*2
  s_add_u32 s4, s4, s5
  s_lshl_b32 s5, s3, 8                   ; w*128*2
  s_add_u32 s48, s4, s5
  ; GU tile: x = b&7, j = b>>3 ; active j<28 ; kb = x*4 + j/7 ; cb = j%7 ; down: fb = x*28 + j
  s_lshr_b32 s5, s2, 3                   ; j
  s_cmp_lt_u32 s5, 28
  s_cselect_b32 s51, 1, 0
  s_min_u32 s5, s5, 27
  s_mul_i32 s6, s5, 37
  s_lshr_b32 s6, s6, 8                   ; j/7  (j<28: (j*37)>>8)
  s_mul_i32 s7, s6, 7
  s_sub_u32 s100, s5, s7                 ; cb
  s_and_b32 s4, s2, 7
  s_lshl_b32 s7, s4, 2
  s_add_u32 s101, s7, s6                 ; kb
  s_mul_i32 s7, s4, 28
  s_add_u32 s95, s7, s5                  ; fb
  s_cmp_ge_u32 s3, 2
  s_cselect_b32 s24, s46, s44
  s_cselect_b32 s25, s47, s45
  s_cmp_eq_u32 s51, 0
  s_cselect_b32 s26, 0, 0x700000
  s_cselect_b32 s30, 0, 0x700000
  s_mov_b32 s27, 0x20000
  s_mov_b32 s31, 0x20000
  s_mul_i32 s4, s101, 229376             ; kb*32*7168
  s_lshl_b32 s5, s100, 10                ; cb*512*2
  s_add_u32 s4, s4, s5
  s_and_b32 s5, s3, 1
  s_lshl_b32 s5, s5, 9                   ; hh*256*2
  s_add_u32 s49, s4, s5
  s_lshl_b32 s4, s95, 15                 ; fb*16*2048
  s_lshl_b32 s5, s3, 9                   ; w*256*2
  s_add_u32 s50, s4, s5
""")
        self.prefetch("start")
        self.stamp("issued")
        self.wait("x")
        F = lambda i: v('F', i)
        for d in range(8):
            e(f"  v_lshlrev_b32 {F(2*d)}, 16, {v('G',d)}\n  v_and_b32 {F(2*d+1)}, s60, {v('G',d)}")
        a1 = v('a1'); a2 = v('a2'); a3 = v('a3'); a4 = v('a4'); a5 = v('a5'); a6 = v('a6')
        e(f"  v_add_f32 {a1}, {F(0)}, {F(1)}\n  v_add_f32 {a2}, {F(2)}, {F(3)}")
        for i in range(4, 16, 2):
            e(f"  v_add_f32 {a1}, {a1}, {F(i)}\n  v_add_f32 {a2}, {a2}, {F(i+1)}")
        e(f"  v_add_f32 {a1}, {a1}, {a2}")
        self.allred64("v_add_f32", a1, t0)
        e(f"  v_mul_f32 {a1}, 0x3a800000, {a1}      ; mean")
        e(f"  v_sub_f32 {t0}, {F(0)}, {a1}\n  v_mul_f32 {a2}, {t0}, {t0}")
        for i in range(1, 16):
            e(f"  v_sub_f32 {t0}, {F(i)}, {a1}\n  v_fmac_f32 {a2}, {t0}, {t0}")
        self.allred64("v_add_f32", a2, t0)
        e(f"  v_mul_f32 {a2}, 0x3a800000, {a2}      ; var")
        self.bf16r(a1, a1); self.bf16r(a2, a2)
        e(f"  v_add_f32 {a2}, 0x3727c5ac, {a2}      ; + 1e-5")
        self.bf16r(a2, a2)
        e(f"  v_sqrt_f32 {a2}, {a2}\n  s_nop 0")
        self.bf16r(a2, a2)
        e(f"  v_rcp_f32 {a3}, {a2}\n  s_nop 0")
        for d in range(4):
            e(f"  v_lshlrev_b32 {F(2*d)}, 16, {v('P',d)}\n  v_and_b32 {F(2*d+1)}, s60, {v('P',d)}")
        for i in range(8):
            e(f"  v_sub_f32 {F(i)}, {F(i)}, {a1}")
            self.bf16r(F(i), F(i))
            e(f"  v_mul_f32 {t0}, {F(i)}, {a3}\n  v_fma_f32 {t1}, -{t0}, {a2}, {F(i)}\n  v_fma_f32 {F(i)}, {t1}, {a3}, {t0}")
        for d in range(4):
            e(f"  v_cvt_pk_bf16_f32 {v('P',d)}, {F(2*d)}, {F(2*d+1)}")
        e(f"""
  v_lshrrev_b32 {t0}, 5, {lane}          ; half = l>>5
  v_lshrrev_b32 {t1}, 3, {lane}
  v_and_b32 {t1}, 1, {t1}                ; b3
  v_cmp_eq_u32 vcc, {t0}, {t1}
  s_lshl_b32 s4, s3, 1
  v_add_u32 {t0}, s4, {t0}               ; 2w+half
  v_lshlrev_b32 {t0}, 8, {t0}
  v_and_b32 {t1}, 7, {lane}
  v_lshl_add_u32 {t0}, {t1}, 5, {t0}     ; + (l&7)*32
  v_and_b32 {t1}, 16, {lane}
  v_add_u32 {t0}, {t0}, {t1}             ; + ((l>>4)&1)*16
  v_add_u32 {t0}, {L_RED}, {t0}
  v_add_u32 {t1}, {L_JUNK}, {v('l16')}
  v_cndmask_b32 {a4}, {t1}, {t0}, vcc
""")
        self.stamp("ln1")
        self.gemv("WQ", 8, 1, "wq", rows_per_lane=8)
        self.stamp("p1mfma")
        e(f"  ds_write_b128 {a4}, {v('D',0,4)}\n  s_waitcnt lgkmcnt(0)\n  s_barrier")
        lab = self.label("p1skip")
        e(f"""
  s_cmp_lg_u32 s3, 0
  s_cbranch_scc1 {lab}
  v_and_b32 {t0}, 15, {lane}
  v_lshrrev_b32 {t1}, 4, {lane}
  v_lshlrev_b32 {t1}, 9, {t1}
  v_lshl_add_u32 {t0}, {t0}, 4, {t1}
  ds_read_b128 {v('G',0,4)}, {t0} offset:{L_RED}
  ds_read_b128 {v('G',4,4)}, {t0} offset:{L_RED+256}
  s_lshr_b32 s4, s2, 6
  s_lshl_b32 s4, s4, 14                  ; ks*16384
  s_and_b32 s5, s2, 63
  s_lshl_b32 s5, s5, 8                   ; cb*256
  s_add_u32 s4, s4, s5
  s_add_u32 s4, s4, {WS_QP}
  s_waitcnt lgkmcnt(0)
""")
        for i in range(4): e(f"  v_add_f32 {v('G',i)}, {v('G',i)}, {v('G',4+i)}")
        for i in range(4): self.allred_rows("v_add_f32", v('G',i), t0)
        self.tag('G', 0)
        e(f"  s_mov_b64 exec, 0xffff")
        e(f"  buffer_store_dwordx4 {v('G',0,4)}, {v('l16')}, s[40:43], s4 offen sc1")
        e(f"  s_mov_b64 exec, -1\n{lab}:")
        self.vm.append("st")
        self.vm.pop()
        self.stamp("qpub")
        self.prefetch("after_q")
        e(f"""
  s_lshl_b32 s4, s96, 12                 ; g*1024*4
  s_add_u32 s4, s4, {WS_QP}
  s_add_u32 s5, s4, 16384
  s_add_u32 s6, s4, 32768
  s_add_u32 s7, s4, 49152
  v_lshlrev_b32 {a1}, 4, v0              ; tid*16
""")
        loads = [f"  buffer_load_dwordx4 {v('G',4*k,4)}, {a1}, s[40:43], s{4+k} offen sc1" for k in range(4)]
        self.poll("hop1", loads, [('G',4*k) for k in range(4)], lambda: self.prefetch("in_hop1"))
        self.stamp("hop1")
        self.mask('G', 0, 16)
        for i in range(4):
            e(f"  v_add_f32 {v('G',i)}, {v('G',i)}, {v('G',4+i)}\n  v_add_f32 {v('G',8+i)}, {v('G',8+i)}, {v('G',12+i)}")
        for i in range(4): e(f"  v_add_f32 {v('G',i)}, {v('G',i)}, {v('G',8+i)}")
        e(f"""
  v_cvt_pk_bf16_f32 {v('G',0)}, {v('G',0)}, {v('G',1)}
  v_cvt_pk_bf16_f32 {v('G',1)}, {v('G',2)}, {v('G',3)}
  v_lshrrev_b32 {t0}, 5, v0              ; head
  v_mul_u32_u24 {t0}, 272, {t0}
  v_and_b32 {t1}, 31, v0
  v_lshl_add_u32 {t0}, {t1}, 3, {t0}
  ds_write_b64 {t0}, {v('G',0,2)} offset:{L_Q}
  v_and_b32 {t0}, 7, {lane}
  v_mul_u32_u24 {t0}, 272, {t0}
  v_lshrrev_b32 {t1}, 4, {lane}
  v_lshl_add_u32 {t0}, {t1}, 4, {t0}
  s_waitcnt lgkmcnt(0)
  s_barrier
""")
        for u in range(4): e(f"  ds_read_b128 {v('G',4*u,4)}, {t0} offset:{L_Q+64*u}")
        self.wait("k")
        e("  s_waitcnt lgkmcnt(0)")
        D0 = v('D',0,4)
        for u in range(4):
            e(f"  v_mfma_f32_16x16x32_bf16 {D0}, {v('K',4*u,4)}, {v('G',4*u,4)}, {'0' if u == 0 else D0}")
        e("  s_nop 7")
        for r in range(4):
            d = v('D', r)
            self.bf16r(d, d)
            e(f"  v_mul_f32 {d}, 0x3db504f3, {d}")
            self.bf16r(d, d)
        e(f"  v_max_f32 {a1}, {v('D',0)}, {v('D',1)}\n  v_max3_f32 {a1}, {v('D',2)}, {v('D',3)}, {a1}")
        self.allred_rows("v_max_f32", a1, t0)
        e(f"""
  v_and_b32 {t0}, 15, {lane}
  v_lshlrev_b32 {t1}, 4, {t0}
  s_lshl_b32 s4, s3, 2
  v_add_u32 {t1}, s4, {t1}
  ds_write_b32 {t1}, {a1} offset:{L_ML}
  v_lshlrev_b32 {a5}, 4, {t0}
  s_waitcnt lgkmcnt(0)
  s_barrier
  ds_read_b128 {v('G',0,4)}, {a5} offset:{L_ML}
  s_waitcnt lgkmcnt(0)
  v_max_f32 {a1}, {v('G',0)}, {v('G',1)}
  v_max3_f32 {a1}, {v('G',2)}, {v('G',3)}, {a1}        ; M[head]
""")
        for r in range(4):
            d = v('D', r)
            e(f"  v_sub_f32 {d}, {d}, {a1}\n  v_mul_f32 {d}, 0x3fb8aa3b, {d}\n  v_exp_f32 {d}, {d}")
        e(f"""
  s_nop 0
  v_add_f32 {a2}, {v('D',0)}, {v('D',1)}
  v_add_f32 {a3}, {v('D',2)}, {v('D',3)}
  v_add_f32 {a2}, {a2}, {a3}
  v_cvt_pk_bf16_f32 {v('G',0)}, {v('D',0)}, {v('D',1)}
  v_cvt_pk_bf16_f32 {v('G',1)}, {v('D',2)}, {v('D',3)}
""")
        self.allred_rows("v_add_f32", a2, t0)
        e(f"""
  v_and_b32 {t0}, 15, {lane}
  v_mul_u32_u24 {t2}, 144, {t0}
  v_lshrrev_b32 {t3}, 4, {lane}
  v_lshl_add_u32 {t2}, {t3}, 3, {t2}
  s_lshl_b32 s4, s3, 5
  v_add_u32 {t2}, s4, {t2}
  v_add_u32 {t2}, {L_P}, {t2}
  v_add_u32 {t3}, {L_JUNK}, {v('l16')}
  v_cmp_gt_u32 vcc, 8, {t0}
  s_nop 1
  v_cndmask_b32 {t2}, {t3}, {t2}, vcc
  ds_write_b64 {t2}, {v('G',0,2)}
  ds_write_b32 {t1}, {a2} offset:{L_ML+256}
""")
        self.wait("v")
        e(f"""
  s_waitcnt lgkmcnt(0)
  s_barrier
  v_and_b32 {t0}, 7, {lane}
  v_mul_u32_u24 {t0}, 144, {t0}
  v_lshrrev_b32 {t2}, 4, {lane}
  v_lshl_add_u32 {t0}, {t2}, 4, {t0}
  ds_read_b128 {v('G',0,4)}, {t0} offset:{L_P}
  ds_read_b128 {v('G',4,4)}, {t0} offset:{L_P+64}
  ds_read_b128 {v('GL',0,4)}, {a5} offset:{L_ML+256}
  v_and_b32 {t3}, 15, {lane}             ; m
  v_lshrrev_b32 {a2}, 2, {t3}            ; m>>2 = row&3
  v_lshl_add_u32 {a3}, {t2}, 3, {a2}     ; 8gk + (m>>2)
  v_lshlrev_b32 {a3}, 8, {a3}            ; row*256
  v_and_b32 {a4}, 3, {t3}
  v_lshrrev_b32 {a6}, 1, {a4}            ; (m&3)>>1
  s_lshl_b32 s4, s3, 2
  v_add_u32 {a6}, s4, {a6}
  v_and_b32 {t2}, 1, {t2}
  v_lshlrev_b32 {t2}, 3, {t2}
  v_lshl_add_u32 {t2}, {a2}, 1, {t2}     ; swz
  v_and_b32 {a4}, 1, {a4}
  v_lshlrev_b32 {a4}, 3, {a4}
  v_add_u32 {a3}, {a3}, {a4}
  v_xor_b32 {a2}, {a6}, {t2}
  v_lshl_add_u32 {a2}, {a2}, 4, {a3}
  v_add_u32 {a6}, 2, {a6}
  v_xor_b32 {a4}, {a6}, {t2}
  v_lshl_add_u32 {a4}, {a4}, 4, {a3}
""")
        Vr = 'F'
        for a, ad in ((0, a2), (1, a4)):
            for u in range(2):
                for hh in range(2):
                    e(f"  ds_read_b64_tr_b16 {v(Vr, 8*a+4*u+2*hh, 2)}, {ad} offset:{L_V + 8192*u + 1024*hh}")
        e("  s_waitcnt lgkmcnt(0)")
        for a in range(2):
            Da = v('D', 4*a, 4)
            for u in range(2):
                e(f"  v_mfma_f32_16x16x32_bf16 {Da}, {v(Vr, 8*a+4*u, 4)}, {v('G', 4*u, 4)}, {'0' if u == 0 else Da}")
        e(f"""
  v_add_f32 {a2}, {v('GL',0)}, {v('GL',1)}
  v_add_f32 {a3}, {v('GL',2)}, {v('GL',3)}
  v_add_f32 {a2}, {a2}, {a3}             ; l[head]
  v_mov_b32 {v('GL',0)}, {a1}
  v_mov_b32 {v('GL',1)}, {a2}
  v_mov_b32 {v('GL',2)}, {a1}
  v_mov_b32 {v('GL',3)}, {a2}
""")
        self.tag('GL', 0)
        e(f"""
  v_and_b32 {t0}, 15, {lane}             ; head
  v_lshlrev_b32 {t1}, 15, {t0}           ; head*4*8192
  v_lshrrev_b32 {t2}, 4, {lane}
  v_lshl_add_u32 {t1}, {t2}, 4, {t1}     ; + g'*16
  s_lshl_b32 s4, s96, 18                 ; g*8*4*8192
  s_lshl_b32 s5, s3, 13                  ; w*8192
  s_add_u32 s4, s4, s5
  s_lshl_b32 s5, s55, 7                  ; s*128
  s_add_u32 s4, s4, s5
  s_add_u32 s4, s4, {WS_OP}
  v_lshlrev_b32 {t3}, 10, {t0}
  s_lshl_b32 s5, s96, 13                 ; g*8*1024
  s_lshl_b32 s6, s55, 4
  s_add_u32 s5, s5, s6
  s_add_u32 s5, s5, {WS_ML}
  s_nop 3
""")
        self.tag('D', 0, 8)
        e(f"  s_mov_b32 exec_lo, 0x00ff00ff\n  s_mov_b32 exec_hi, 0x00ff00ff")
        self.vmem(f"  buffer_store_dwordx4 {v('D',0,4)}, {t1}, s[40:43], s4 offen sc1", "st")
        self.vmem(f"  buffer_store_dwordx4 {v('D',4,4)}, {t1}, s[40:43], s4 offen offset:64 sc1", "st")
        lab = self.label("mlskip")
        e(f"  s_mov_b64 exec, 0xff\n  s_cmp_lg_u32 s3, 0\n  s_cbranch_scc1 {lab}")
        e(f"  buffer_store_dwordx4 {v('GL',0,4)}, {t3}, s[40:43], s5 offen sc1")
        e(f"{lab}:\n  s_mov_b64 exec, -1")
        self.stamp("opub")
        self.prefetch("after_o")
        e(f"""
  s_lshl_b32 s4, s98, 13                 ; p*8192
  s_lshl_b32 s5, s3, 11                  ; w*2048
  s_add_u32 s4, s4, s5
  s_add_u32 s4, s4, {WS_OP}
  s_lshr_b32 s5, s98, 2                  ; head
  s_lshl_b32 s5, s5, 10
  s_add_u32 s5, s5, {WS_ML}
""")
        loads = [f"  buffer_load_dwordx4 {v('G',0,4)}, {v('l16')}, s[40:43], s4 offen sc1",
                 f"  buffer_load_dwordx4 {v('G',4,4)}, {v('l16')}, s[40:43], s4 offen offset:1024 sc1",
                 f"  buffer_load_dwordx4 {v('GL',0,4)}, {v('l16')}, s[40:43], s5 offen sc1"]
        self.poll("hop2", loads, [('G',0), ('G',4), ('GL',0)], lambda: self.prefetch("in_hop2"))
        self.stamp("hop2")
        self.mask('G', 0, 8); self.mask('GL', 0, 2)
        e(f"  v_mov_b32 {a1}, {v('GL',0)}")
        self.allred64("v_max_f32", a1, t0)
        e(f"""
  v_sub_f32 {a2}, {v('GL',0)}, {a1}
  v_mul_f32 {a2}, 0x3fb8aa3b, {a2}
  v_exp_f32 {a2}, {a2}
  s_nop 0
  v_mul_f32 {a3}, {a2}, {v('GL',1)}
""")
        self.allred64("v_add_f32", a3, t0)
        e(f"""
  v_rcp_f32 {a3}, {a3}
  v_lshrrev_b32 {t0}, 3, {lane}
  s_lshl_b32 s4, s3, 4
  v_add_u32 {t0}, s4, {t0}
  v_mul_f32 {a2}, {a2}, {a3}
  v_lshlrev_b32 {t0}, 2, {t0}
  v_add_u32 {t1}, 32, {t0}
  s_nop 0
  ds_bpermute_b32 {a4}, {t0}, {a2}
  ds_bpermute_b32 {a5}, {t1}, {a2}
  s_waitcnt lgkmcnt(0)
""")
        for i in range(4):
            e(f"  v_mul_f32 {v('G',i)}, {v('G',i)}, {a4}\n  v_fmac_f32 {v('G',i)}, {v('G',4+i)}, {a5}")
        self.reduce32(L_RED)
        e(f"  v_mov_b32 {a1}, {v('G',0)}")
        self.pack_distribute(a1, 8)
        self.prefetch_until("wo")
        self.prefetch("pre_p3")
        self.gemv("WO", 8, 1, "wo", rows_per_lane=8)
        e(f"""
  v_and_b32 {t0}, 15, {lane}
  v_lshrrev_b32 {t1}, 2, {t0}
  v_lshlrev_b32 {t1}, 14, {t1}
  v_and_b32 {t0}, 3, {t0}
  v_lshl_add_u32 {t1}, {t0}, 5, {t1}
  v_and_b32 {t0}, 16, {lane}
  v_add_u32 {t1}, {t1}, {t0}
  s_lshl_b32 s4, s99, 4
  s_lshl_b32 s5, s3, 2
  s_add_u32 s4, s4, s5
  s_lshl_b32 s4, s4, 14
  s_lshl_b32 s5, s98, 7
  s_add_u32 s4, s4, s5
  s_add_u32 s4, s4, {WS_WP}
""")
        self.tag('D', 0)
        e("  s_mov_b32 exec_hi, 0")
        self.vmem(f"  buffer_store_dwordx4 {v('D',0,4)}, {t1}, s[40:43], s4 offen sc1", "st")
        e("  s_mov_b64 exec, -1")
        self.stamp("wpub")
        self.prefetch("after_w")
        lab_final = "L_FINAL"
        e(f"  s_cmp_eq_u32 s51, 0\n  s_cbranch_scc1 L_FINAL_DRAIN")
        vm_save = list(self.vm)
        e(f"""
  s_lshl_b32 s4, s101, 14                ; kb*16384
  s_lshl_b32 s5, s3, 12                  ; w*4096
  s_add_u32 s4, s4, s5
  s_add_u32 s4, s4, {WS_WP}
  s_lshl_b32 s5, s101, 6
  v_and_b32 {a6}, 31, {lane}
  v_lshlrev_b32 {a6}, 1, {a6}
""")
        self.vmem(f"  buffer_load_ushort {v('a7')}, {a6}, s[32:35], s5 offen", "xh")
        loads = [f"  buffer_load_dwordx4 {v('G',4*k,4)}, {v('l16')}, s[40:43], s4 offen offset:{1024*k} sc1" for k in range(4)]
        self.poll("hop3", loads, [('G',4*k) for k in range(4)], lambda: self.prefetch("in_hop3"))
        self.stamp("hop3")
        self.mask('G', 0, 16)
        for i in range(4):
            e(f"  v_add_f32 {v('G',i)}, {v('G',i)}, {v('G',4+i)}\n  v_add_f32 {v('G',8+i)}, {v('G',8+i)}, {v('G',12+i)}")
        for i in range(4): e(f"  v_add_f32 {v('G',i)}, {v('G',i)}, {v('G',8+i)}")
        self.reduce32(L_RED2)
        a7 = v('a7'); a8 = v('a8')
        e(f"  v_mov_b32 {a1}, {v('G',0)}")
        self.bf16r(a1, a1)
        e(f"  v_lshlrev_b32 {a7}, 16, {a7}\n  v_add_f32 {a1}, {a1}, {a7}")
        self.bf16r(a1, a1)
        e(f"  v_mov_b32 {a2}, {a1}\n  v_mul_f32 {a3}, {a1}, {a1}")
        self.allred16("v_add_f32", a2); self.allred16("v_add_f32", a3)
        self.allred_rows("v_add_f32", a2, t0, which=(16,)); self.allred_rows("v_add_f32", a3, t0, which=(16,))
        e(f"""
  v_mov_b32 {v('GL',0)}, {a2}
  v_mov_b32 {v('GL',1)}, {a3}
  v_mov_b32 {v('GL',2)}, {a2}
  v_mov_b32 {v('GL',3)}, {a3}
""")
        self.tag('GL', 0)
        e(f"""
  v_mov_b32_dpp {v('F',0)}, {a1} quad_perm:[0,0,0,0] row_mask:0xf bank_mask:0xf
  v_mov_b32_dpp {v('F',1)}, {a1} quad_perm:[1,1,1,1] row_mask:0xf bank_mask:0xf
  v_mov_b32_dpp {v('F',2)}, {a1} quad_perm:[2,2,2,2] row_mask:0xf bank_mask:0xf
  v_mov_b32_dpp {v('F',3)}, {a1} quad_perm:[3,3,3,3] row_mask:0xf bank_mask:0xf
""")
        self.tag('F', 0)
        lab = self.label("stskip")
        e(f"""
  s_cmp_lg_u32 s3, 0
  s_cbranch_scc1 {lab}
  s_mul_i32 s4, s100, 512
  s_lshl_b32 s5, s101, 4
  s_add_u32 s4, s4, s5
  s_add_u32 s4, s4, {WS_ST}
  v_mov_b32 {t0}, 0
  s_mov_b64 exec, 1
  buffer_store_dwordx4 {v('GL',0,4)}, {t0}, s[40:43], s4 offen sc1
  s_mov_b64 exec, -1
  s_cmp_lg_u32 s100, 0
  s_cbranch_scc1 {lab}
  s_lshl_b32 s4, s101, 7
  s_add_u32 s4, s4, {WS_HB}
  v_lshlrev_b32 {t0}, 2, {lane}
  s_mov_b32 exec_lo, 0x11111111
  s_mov_b32 exec_hi, 0
  buffer_store_dwordx4 {v('F',0,4)}, {t0}, s[40:43], s4 offen sc1
  s_mov_b64 exec, -1
{lab}:
""")
        self.pack_distribute(a1, 8, cs=True)
        self.prefetch_until("gu")
        self.prefetch("pre_p4")
        self.gemv("GU", 8, 2, "gu", rows_per_lane=8)
        e(f"""
  v_and_b32 {t0}, 15, {lane}             ; j
  v_lshrrev_b32 {t1}, 1, {t0}
  v_lshlrev_b32 {t1}, 13, {t1}           ; (j>>1)*8192
  v_and_b32 {t0}, 1, {t0}
  v_lshl_add_u32 {t1}, {t0}, 5, {t1}     ; + (j&1)*32
  v_and_b32 {t0}, 16, {lane}
  v_add_u32 {t1}, {t1}, {t0}             ; + (g'&1)*16
  v_lshrrev_b32 {t0}, 5, {lane}
  v_lshl_add_u32 {t1}, {t0}, 6, {t1}     ; + kind*64
  s_lshl_b32 s4, s100, 5
  s_and_b32 s5, s3, 1
  s_lshl_b32 s5, s5, 4
  s_add_u32 s4, s4, s5
  s_lshl_b32 s4, s4, 13
  s_lshl_b32 s5, s101, 8
  s_add_u32 s4, s4, s5
  s_lshr_b32 s5, s3, 1
  s_lshl_b32 s5, s5, 7
  s_add_u32 s4, s4, s5
  s_add_u32 s4, s4, {WS_GP}
  s_add_u32 s5, s4, 65536
""")
        self.tag('D', 0, 8)
        self.vmem(f"  buffer_store_dwordx4 {v('D',0,4)}, {t1}, s[40:43], s4 offen sc1", "st")
        self.vmem(f"  buffer_store_dwordx4 {v('D',4,4)}, {t1}, s[40:43], s5 offen sc1", "st")
        self.stamp("gpub")
        self.prefetch("after_g")
        e(f"""
  s_lshl_b32 s4, s95, 13                 ; fb*8192
  s_lshl_b32 s5, s3, 11
  s_add_u32 s4, s4, s5
  s_add_u32 s4, s4, {WS_GP}
  s_lshr_b32 s5, s95, 5
  s_lshl_b32 s5, s5, 9
  s_add_u32 s5, s5, {WS_ST}
  v_and_b32 {a6}, 31, {lane}
  v_lshlrev_b32 {a6}, 4, {a6}
""")
        loads = [f"  buffer_load_dwordx4 {v('G',0,4)}, {v('l16')}, s[40:43], s4 offen sc1",
                 f"  buffer_load_dwordx4 {v('G',4,4)}, {v('l16')}, s[40:43], s4 offen offset:1024 sc1",
                 f"  buffer_load_dwordx4 {v('GL',0,4)}, {a6}, s[40:43], s5 offen sc1"]
        self.poll("hop4", loads, [('G',0), ('G',4), ('GL',0)], lambda: self.prefetch("in_hop4"))
        self.stamp("hop4")
        self.mask('G', 0, 8); self.mask('GL', 0, 2)
        for i in range(4): e(f"  v_add_f32 {v('G',i)}, {v('G',i)}, {v('G',4+i)}")
        self.scatter4([v('G',0), v('G',1), v('G',2), v('G',3)])
        e(f"""
  v_and_b32 {t0}, 15, {lane}
  v_lshlrev_b32 {t0}, 2, {t0}
  v_lshrrev_b32 {t1}, 5, {lane}
  v_lshl_add_u32 {t0}, {t1}, 1, {t0}
  v_lshrrev_b32 {t1}, 4, {lane}
  v_and_b32 {t1}, 1, {t1}
  v_add_u32 {t0}, {t0}, {t1}
  v_lshlrev_b32 {t0}, 4, {t0}
  s_lshl_b32 s4, s3, 2
  v_add_u32 {t0}, s4, {t0}
  ds_write_b32 {t0}, {v('G',0)} offset:{L_RED}
""")
        e(f"  v_mov_b32 {a2}, {v('GL',0)}\n  v_mov_b32 {a3}, {v('GL',1)}")
        self.allred16("v_add_f32", a2); self.allred16("v_add_f32", a3)
        self.allred_rows("v_add_f32", a2, t0, which=(16,)); self.allred_rows("v_add_f32", a3, t0, which=(16,))
        e(f"""
  v_mul_f32 {a2}, 0x3a800000, {a2}       ; mean
  v_mul_f32 {a3}, 0x3a800000, {a3}       ; E[h^2]
  v_fma_f32 {a3}, -{a2}, {a2}, {a3}      ; var
  v_max_f32 {a3}, 0, {a3}
""")
        self.bf16r(a2, a2); self.bf16r(a3, a3)
        e(f"  v_add_f32 {a3}, 0x3727c5ac, {a3}")
        self.bf16r(a3, a3)
        e(f"  v_sqrt_f32 {a3}, {a3}\n  s_nop 0")
        self.bf16r(a3, a3)
        e(f"""
  v_rcp_f32 {a4}, {a3}
  s_waitcnt lgkmcnt(0)
  s_barrier
  ds_read_b128 {v('G',0,4)}, {v('l16')} offset:{L_RED}
  s_waitcnt lgkmcnt(0)
  v_add_f32 {v('G',0)}, {v('G',0)}, {v('G',1)}
  v_add_f32 {v('G',2)}, {v('G',2)}, {v('G',3)}
  v_add_f32 {a1}, {v('G',0)}, {v('G',2)}
  v_mov_b32 {a5}, {a1}
  s_nop 1
  v_permlane16_swap_b32 {a1}, {a5}
  v_fma_f32 {a1}, -{a2}, {a5}, {a1}
  v_mul_f32 {t0}, {a1}, {a4}
  v_fma_f32 {t1}, -{t0}, {a3}, {a1}
  v_fma_f32 {a1}, {t1}, {a4}, {t0}       ; / std
""")
        self.bf16r(a1, a1)
        e(f"""
  v_mov_b32 {a5}, {a1}
  s_nop 1
  v_permlane32_swap_b32 {a1}, {a5}
  v_max_f32 {a1}, 0, {a1}
  v_mul_f32 {a1}, {a1}, {a5}
""")
        self.pack_distribute(a1, 4)
        self.prefetch_until("wd")
        self.gemv("WD", 4, 2, "wd", rows_per_lane=4)
        e(f"""
  v_and_b32 {t0}, 15, {lane}
  v_lshlrev_b32 {t1}, 5, {t0}
  v_and_b32 {t0}, 16, {lane}
  v_add_u32 {t1}, {t1}, {t0}
  s_lshl_b32 s4, s95, 12
  s_lshl_b32 s5, s3, 10
  s_add_u32 s4, s4, s5
  s_add_u32 s4, s4, {WS_DP}
""")
        self.tag('D', 0, 8)
        e("  s_mov_b32 exec_hi, 0")
        self.vmem(f"  buffer_store_dwordx4 {v('D',0,4)}, {t1}, s[40:43], s4 offen sc1", "st")
        self.vmem(f"  buffer_store_dwordx4 {v('D',4,4)}, {t1}, s[40:43], s4 offen offset:512 sc1", "st")
        e("  s_mov_b64 exec, -1")
        self.stamp("dpub")
        e("  s_branch L_FINAL")
        e("L_FINAL_DRAIN:")
        if self.prof:
            for k in range(self.stamps.index("hop3"), self.stamps.index("dpub")+1):
                e(f"  s_memrealtime s[{64+2*k}:{65+2*k}]")
        e("  s_waitcnt vmcnt(0)")
        e("L_FINAL:")
        self.vm = []
        e(f"""
  s_lshr_b32 s5, s2, 3                   ; j
  s_lshr_b32 s6, s5, 3
  s_lshl_b32 s6, s6, 6
  s_and_b32 s7, s2, 7
  s_lshl_b32 s7, s7, 3
  s_add_u32 s6, s6, s7
  s_and_b32 s5, s5, 7
  s_add_u32 s94, s6, s5                  ; G
  s_lshl_b32 s4, s94, 4
  s_add_u32 s5, s4, {WS_HB}
  s_add_u32 s4, s4, {WS_DP}
  v_min_u32 {a6}, 223, v0
  v_lshlrev_b32 {a6}, 12, {a6}
  v_mov_b32 {a7}, 0
""")
        loads = [f"  buffer_load_dwordx4 {v('G',0,4)}, {a6}, s[40:43], s4 offen sc1",
                 f"  buffer_load_dwordx4 {v('GL',0,4)}, {a7}, s[40:43], s5 offen sc1"]
        self.poll("hop5", loads, [('G',0), ('GL',0)])
        self.stamp("hop5")
        self.mask('G', 0, 4); self.mask('GL', 0, 4)
        e(f"  v_cmp_gt_u32 vcc, 224, v0\n  s_nop 1")
        for i in range(4): e(f"  v_cndmask_b32 {v('G',i)}, 0, {v('G',i)}, vcc")
        self.scatter4([v('G',0), v('G',1), v('G',2), v('G',3)])
        self.allred16("v_add_f32", v('G',0))
        e(f"""
  v_lshrrev_b32 {t0}, 4, {lane}          ; b5*2+b4 = component
  v_lshlrev_b32 {t0}, 4, {t0}
  s_lshl_b32 s4, s3, 2
  v_add_u32 {t0}, s4, {t0}
  ds_write_b32 {t0}, {v('G',0)} offset:{L_RED2}
  s_waitcnt lgkmcnt(0)
  s_barrier
  s_cmp_lg_u32 s3, 0
  s_cbranch_scc1 L_FIN
  v_and_b32 {t0}, 3, {lane}
  v_lshlrev_b32 {t0}, 4, {t0}
  ds_read_b128 {v('G',0,4)}, {t0} offset:{L_RED2}
  s_waitcnt lgkmcnt(0)
  v_add_f32 {v('G',0)}, {v('G',0)}, {v('G',1)}
  v_add_f32 {v('G',2)}, {v('G',2)}, {v('G',3)}
  v_add_f32 {a1}, {v('G',0)}, {v('G',2)}
""")
        self.bf16r(a1, a1)
        e(f"""
  s_nop 1
  v_mov_b32_dpp {v('F',0)}, {a1} quad_perm:[0,0,0,0] row_mask:0xf bank_mask:0xf
  v_mov_b32_dpp {v('F',1)}, {a1} quad_perm:[1,1,1,1] row_mask:0xf bank_mask:0xf
  v_mov_b32_dpp {v('F',2)}, {a1} quad_perm:[2,2,2,2] row_mask:0xf bank_mask:0xf
  v_mov_b32_dpp {v('F',3)}, {a1} quad_perm:[3,3,3,3] row_mask:0xf bank_mask:0xf
""")
        for i in range(4): e(f"  v_add_f32 {v('F',i)}, {v('F',i)}, {v('GL',i)}")
        e(f"""
  v_cvt_pk_bf16_f32 {v('F',0)}, {v('F',0)}, {v('F',1)}
  v_cvt_pk_bf16_f32 {v('F',1)}, {v('F',2)}, {v('F',3)}
  s_lshl_b32 s4, s94, 3
  v_mov_b32 {t0}, 0
  s_mov_b64 exec, 1
  buffer_store_dwordx2 {v('F',0,2)}, {t0}, s[36:39], s4 offen
  s_cmp_lg_u32 s2, 0
  s_cbranch_scc1 L_FIN
  v_mov_b32 {t1}, s54
  buffer_store_dword {t1}, {t0}, s[40:43], 0 offen sc1
L_FIN:
""")
        self.stamp("end")
        if self.prof:
            e(f"""
  s_waitcnt lgkmcnt(0)
  s_lshl_b32 s4, s2, 2
  s_add_u32 s4, s4, s3
  s_lshl_b32 s4, s4, 7
  s_add_u32 s4, s4, {WS_PROF}
  v_mov_b32 {t0}, 0
  s_mov_b64 exec, 1
  v_mov_b32 {t1}, s62
  buffer_store_dword {t1}, {t0}, s[40:43], s4 offen
""")
            for k in range(self.nstamp):
                e(f"  s_nop 1\n  v_mov_b32 {t1}, s{64+2*k}\n  buffer_store_dword {t1}, {t0}, s[40:43], s4 offen offset:{4+4*k}")
        e("L_END:\n  s_endpgm")
        return self

    def reduce32(self, lred):
        e = self.e; v = self.v
        t0 = v('t0'); t1 = v('t1'); lane = v('lane')
        self.scatter4([v('G',0), v('G',1), v('G',2), v('G',3)])
        e(f"  s_nop 1\n  v_add_f32_dpp {v('G',0)}, {v('G',0)}, {v('G',0)} row_ror:8 row_mask:0xf bank_mask:0xf")
        e(f"""
  v_and_b32 {t0}, 7, {lane}
  v_lshlrev_b32 {t0}, 2, {t0}
  v_lshrrev_b32 {t1}, 5, {lane}
  v_lshl_add_u32 {t0}, {t1}, 1, {t0}
  v_lshrrev_b32 {t1}, 4, {lane}
  v_and_b32 {t1}, 1, {t1}
  v_add_u32 {t0}, {t0}, {t1}
  v_lshlrev_b32 {t0}, 4, {t0}
  s_lshl_b32 s4, s3, 2
  v_add_u32 {t0}, s4, {t0}
  ds_write_b32 {t0}, {v('G',0)} offset:{lred}
  v_and_b32 {t0}, 31, {lane}
  v_lshlrev_b32 {t0}, 4, {t0}
  s_waitcnt lgkmcnt(0)
  s_barrier
  ds_read_b128 {v('G',0,4)}, {t0} offset:{lred}
  s_waitcnt lgkmcnt(0)
  v_add_f32 {v('G',0)}, {v('G',0)}, {v('G',1)}
  v_add_f32 {v('G',2)}, {v('G',2)}, {v('G',3)}
  v_add_f32 {v('G',0)}, {v('G',0)}, {v('G',2)}
""")
    def pack_distribute(self, val, rows_per_lane, cs=False):
        e = self.e; v = self.v
        t0 = v('t0'); t1 = v('t1'); t2 = v('t2'); lane = v('lane')
        e(f"""
  s_nop 1
  v_mov_b32_dpp {t0}, {val} quad_perm:[1,1,3,3] row_mask:0xf bank_mask:0xf
  v_cvt_pk_bf16_f32 {t0}, {val}, {t0}
  v_lshrrev_b32 {t1}, 4, {lane}
  v_mul_u32_u24 {t1}, {rows_per_lane*4}, {t1}
""")
        n = rows_per_lane//2
        for u in range(n):
            if u: e(f"  v_add_u32 {t1}, 8, {t1}")
            e(f"  ds_bpermute_b32 {v('P',u)}, {t1}, {t0}")
        e("  s_waitcnt lgkmcnt(0)")
        if cs:
            e(f"  v_and_b32 {t1}, 8, {lane}\n  v_cmp_ne_u32 vcc, 0, {t1}\n  v_mov_b32 {t2}, 0x3f803f80\n  s_nop 0")
            for u in range(n): e(f"  v_cndmask_b32 {v('P',u)}, {v('P',u)}, {t2}, vcc")
    def gemv(self, W, nt, ncol, tag, rows_per_lane):
        e = self.e; v = self.v
        self.build_A(('A', 0), v('P', 0), 0)
        self.wait(tag)
        for t in range(nt):
            cur = 4*(t & 1); nxt = 4*((t+1) & 1)
            if t + 1 < nt:
                self.build_A(('A', nxt), v('P', (t+1)//2), (t+1) & 1)
            else:
                e("  s_nop 1")
            for a in range(ncol):
                Dd = v('D', 4*a, 4)
                e(f"  v_mfma_f32_16x16x32_bf16 {Dd}, {v('A', cur, 4)}, {v(W, (t*ncol+a)*4, 4)}, {'0' if t == 0 else Dd}")
        e("  s_nop 7")

def emit(path, **kw):
    g = Gen(**kw).build()
    body = "\n".join(g.l)
    nv = (g.vnext + 7)//8*8
    txt = HDR + f"; @launch grid=(256,1,1) block=(256,1,1) lds={LDS_BYTES}\n"
    txt += f""".amdgcn_target "amdgcn-amd-amdhsa--gfx950"
.text
.globl {KNAME}
.p2align 8
.type {KNAME},@function
{body}
.section .rodata,"a"
.p2align 6
.amdhsa_kernel {KNAME}
  .amdhsa_next_free_vgpr {nv}
  .amdhsa_next_free_sgpr 102
  .amdhsa_accum_offset {nv}
  .amdhsa_group_segment_fixed_size 0
  .amdhsa_kernarg_size 96
  .amdhsa_user_sgpr_count 2
  .amdhsa_user_sgpr_kernarg_segment_ptr 1
  .amdhsa_system_sgpr_workgroup_id_x 1
.end_amdhsa_kernel
"""
    open(path, "w").write(txt)
    return g

DEFAULT_SCHED = dict(start=0, after_q=4, in_hop1=4, after_o=6, in_hop2=4, pre_p3=0, after_w=6, in_hop3=4, pre_p4=2, after_g=2, in_hop4=0)
if __name__ == "__main__":
    import json
    kw = json.loads(sys.argv[2]) if len(sys.argv) > 2 else {}
    kw.setdefault("sched", DEFAULT_SCHED)
    g = emit(sys.argv[1], **kw)
    print("vgprs", g.vnext, "lines", len(g.l), "stamps", g.stamps)
```

```python
import sys
KNAME = "sequential_preLN__sliding_block_cached__glu_gated_reglu__decode_kernel"
HDR = """; Kernarg layout for this problem (96 bytes, ptrs only, base s[0:1]):
"""
WS_QP   = 0x10000
WS_ML   = 0x20000
WS_ST   = 0x28000
WS_OP   = 0x100000
WS_WP   = 0x200000
WS_GP   = 0x280000
WS_DP   = 0x480000
WS_PROF = 0x800000
L_V    = 0
L_RED  = 16384
L_JUNK = 18432
L_Q    = 19456
L_P    = 21760
L_ML   = 23040
L_RED2 = 23552
LDS_BYTES = 98304
S_WQ, S_K, S_V, S_WO, S_GU, S_WD, S_X, S_OUT, S_WS = 8, 12, 16, 20, 24, 28, 32, 36, 40
def srd(b): return f"s[{b}:{b+3}]"
sWO, sGUo, sWDo, sACT, sEPO = "s48", "s49", "s50", "s51", "s54"
sFF, sTAG32, sMHI, sSPIN, sTAG = "s56", "s57", "s60", "s61", "s59"
sC16K, sC32K, sC48K, sC64K, sC4K, sCDP = "s44", "s45", "s46", "s47", "s52", "s53"
sSCALE = "s[92:93]"

class Gen:
    def __init__(self, prof=False, sched=None, spin=1<<16, sleep_retry=2, gates=None, waitst=None, codepf=True, setprio=0):
        self.l = []; self.prof = prof; self.vnext = 1; self.anext = 0
        self.vn = {}; self.vm = []; self.nstamp = 0; self.lab = 0
        self.spin = spin; self.sleep_retry = sleep_retry
        self.sched = sched or {}; self.gates = gates or {}; self.waitst = waitst or {}
        self.codepf = codepf; self.setprio = setprio
    def e(self, s):
        for x in s.strip("\n").split("\n"): self.l.append(x)
    def label(self, base):
        self.lab += 1; return f"L_{base}_{self.lab}"
    def va(self, name, n=1, align=1):
        if n >= 2 and align < 2: align = 2
        if n >= 4: align = max(align, 4)
        p = (self.vnext + align - 1)//align*align
        self.vn[name] = ('v', p, n); self.vnext = p + n
        assert self.vnext <= 256, "out of vgprs"
    def aa(self, name, n):
        p = (self.anext + 3)//4*4
        self.vn[name] = ('a', p, n); self.anext = p + n
    def v(self, name, i=0, n=1):
        k, p, cnt = self.vn[name]
        assert i + n <= cnt, (name, i, n, cnt)
        return f"{k}{p+i}" if n == 1 else f"{k}[{p+i}:{p+i+n-1}]"
    def vmem(self, txt, tag): self.e(txt); self.vm.append(tag)
    def waitn(self, tag):
        idx = max(i for i, t in enumerate(self.vm) if t == tag)
        n = len(self.vm) - 1 - idx
        assert n <= 63
        return n
    def wait(self, tag, extra=""): self.e(f"  s_waitcnt vmcnt({self.waitn(tag)}){extra}")
    def stamp(self, name):
        if not self.prof: return
        k = self.nstamp; self.nstamp += 1
        assert k < 15
        self.e(f"  s_memrealtime s[{64+2*k}:{65+2*k}]")
        self.stamps.append(name)
    def bf16r(self, dst, src):
        self.e(f"  v_cvt_pk_bf16_f32 {dst}, {src}, {src}\n  v_and_b32 {dst}, {sMHI}, {dst}")
    DPP16 = ("quad_perm:[1,0,3,2]", "quad_perm:[2,3,0,1]", "row_half_mirror", "row_mirror")
    def allred16(self, op, vs):
        for m in self.DPP16:
            if len(vs) < 3: self.e("  s_nop 1" if len(vs) == 1 else "  s_nop 0")
            for v in vs: self.e(f"  {op}_dpp {v}, {v}, {v} {m} row_mask:0xf bank_mask:0xf")
    def allred_rows(self, op, vs, ts, which=(16, 32)):
        for k in which:
            for v, t in zip(vs, ts): self.e(f"  v_mov_b32 {t}, {v}")
            if len(vs) < 3: self.e("  s_nop 1" if len(vs) == 1 else "  s_nop 0")
            for v, t in zip(vs, ts): self.e(f"  v_permlane{k}_swap_b32 {v}, {t}")
            for v, t in zip(vs, ts): self.e(f"  {op} {v}, {v}, {t}")
    def scatter4(self, a, fill1="", fill2=""):
        self.e(fill1 if fill1 else "  s_nop 1")
        self.e(f"  v_permlane32_swap_b32 {a[0]}, {a[2]}\n  v_permlane32_swap_b32 {a[1]}, {a[3]}")
        self.e(f"  v_add_f32 {a[0]}, {a[0]}, {a[2]}\n  v_add_f32 {a[1]}, {a[1]}, {a[3]}")
        self.e(fill2 if fill2 else "  s_nop 1")
        self.e(f"  v_permlane16_swap_b32 {a[0]}, {a[1]}\n  v_add_f32 {a[0]}, {a[0]}, {a[1]}")
    def build_A(self, off, P, par):
        for d in range(4):
            self.e(f"  v_perm_b32 {self.v('A', off+d)}, {P}, {P}, {self.v('sel', 2*d+par)}")
    def check_tags(self, regs):
        v = self.v; bad = v('bad'); t0 = v('t0'); t1 = v('t1')
        for k, (name, off) in enumerate(regs):
            g = [v(name, off+i) for i in range(4)]
            if k == 0:
                self.e(f"  v_bitop3_b32 {bad}, {g[0]}, {g[1]}, {sTAG32} bitop3:0x7e")
                self.e(f"  v_bitop3_b32 {t1}, {g[2]}, {g[3]}, {sTAG32} bitop3:0x7e")
                self.e(f"  v_or_b32 {bad}, {bad}, {t1}")
            else:
                self.e(f"  v_bitop3_b32 {t0}, {g[0]}, {g[1]}, {sTAG32} bitop3:0x7e")
                self.e(f"  v_bitop3_b32 {t1}, {g[2]}, {g[3]}, {sTAG32} bitop3:0x7e")
                self.e(f"  v_or3_b32 {bad}, {t0}, {t1}, {bad}")
    def check_xor(self, regs):
        v = self.v; bad = v('bad')
        flat = [v(name, off+i) for (name, off) in regs for i in range(4)]
        for r in flat: self.e(f"  v_xor_b32 {r}, {sTAG}, {r}")
        self.e(f"  v_or3_b32 {bad}, {flat[0]}, {flat[1]}, {flat[2]}")
        i = 3
        while i + 1 < len(flat):
            self.e(f"  v_or3_b32 {bad}, {flat[i]}, {flat[i+1]}, {bad}"); i += 2
        if i < len(flat): self.e(f"  v_or_b32 {bad}, {bad}, {flat[i]}")
    def poll(self, name, loads, granules, after_first=None, xor=False, lanemask=None):
        v = self.v
        if self.waitst.get(name): self.wait("st")
        g = self.gates.get(name)
        if g: self.e(f"  s_sleep {g}")
        for s in loads: self.vmem(s, name)
        if after_first: after_first()
        self.wait(name)
        ok = self.label("ok"); rt = self.label("retry")
        chk = (lambda: self.check_xor(granules)) if xor else (lambda: self.check_tags(granules))
        def cmp():
            self.e(f"  v_cmp_ne_u32_sdwa vcc, {v('bad')}, {v('zero')} src0_sel:BYTE_0 src1_sel:DWORD")
        chk(); cmp()
        self.e(f"  s_cbranch_vccz {ok}")
        self.e(f"{rt}:")
        self.e(f"  s_sub_u32 {sSPIN}, {sSPIN}, 1\n  s_cbranch_scc1 L_END")
        if self.sleep_retry: self.e(f"  s_sleep {self.sleep_retry}")
        for s in loads: self.e(s)
        self.e("  s_waitcnt vmcnt(0)")
        chk(); cmp()
        self.e(f"  s_cbranch_vccnz {rt}")
        self.e(f"{ok}:")
        if self.prof:
            self.npoll = getattr(self, 'npoll', 0) + 1
            self.e(f"  v_writelane_b32 {v('prf')}, {sSPIN}, {self.npoll}")
    def tag(self, name, off, n=4, rn=False):
        for i in range(n):
            r = self.v(name, off+i)
            if rn: self.e(f"  v_add_u32 {r}, 0x80, {r}")
        for i in range(n):
            r = self.v(name, off+i)
            self.e(f"  v_bfi_b32 {r}, {sFF}, {self.v('tag')}, {r}")
    def init_prefetch(self):
        v = self.v; q = []
        for t in range(8):
            q.append(("wo", f"  buffer_load_dwordx4 {v('WO', 4*t, 4)}, {v('offWO')}, {srd(S_WO)}, {sWO} offen nt", sWO, 2048))
        for t in range(8):
            for a in range(2):
                q.append(("gu", f"  buffer_load_dwordx4 {v('GU', 8*t+4*a, 4)}, {v('offGU')}, {srd(S_GU)}, {sGUo} offen offset:{256*a} nt", sGUo if a == 1 else None, 7168))
        for t in range(4):
            for a in range(2):
                q.append(("wd", f"  buffer_load_dwordx4 {v('WD', 8*t+4*a, 4)}, {v('offWD')}, {srd(S_WD)}, {sWDo} offen offset:{256*a} nt", sWDo if a == 1 else None, 2048))
        self.pq = q; self.pqi = 0
    def prefetch(self, point): self.prefetch_n(self.sched.get(point, 0))
    def prefetch_n(self, n):
        for _ in range(n):
            if self.pqi >= len(self.pq): return
            tag, txt, sreg, step = self.pq[self.pqi]; self.pqi += 1
            self.vmem(txt, tag)
            if sreg: self.e(f"  s_add_u32 {sreg}, {sreg}, {step}")
    def prefetch_until(self, tag):
        while any(t == tag for (t, _, _, _) in self.pq[self.pqi:]): self.prefetch_n(1)
    def gemv(self, W, nt, ncol, tag, mid=None):
        e = self.e; v = self.v
        self.build_A(0, v('P', 0), 0)
        self.wait(tag)
        for t in range(nt):
            cur = 4*(t & 1); nxt = 4*((t+1) & 1)
            if t + 1 < nt: self.build_A(nxt, v('P', (t+1)//2), (t+1) & 1)
            elif ncol == 1: e("  s_nop 0")
            for a in range(ncol):
                Dd = v('D', 4*a, 4)
                e(f"  v_mfma_f32_16x16x32_bf16 {Dd}, {v('A', cur, 4)}, {v(W, (t*ncol+a)*4, 4)}, {'0' if t == 0 else Dd}")
        e(mid if mid else "  s_nop 7")
    def pk_sum(self, name, groups):
        v = self.v; g = list(groups)
        while len(g) > 1:
            n = []
            for i in range(0, len(g) - 1, 2):
                a, b = g[i], g[i+1]
                self.e(f"  v_pk_add_f32 {v(name,4*a,2)}, {v(name,4*a,2)}, {v(name,4*b,2)}\n  v_pk_add_f32 {v(name,4*a+2,2)}, {v(name,4*a+2,2)}, {v(name,4*b+2,2)}")
                n.append(a)
            if len(g) % 2: n.append(g[-1])
            g = n
    def reduce32_tail(self, lred, fill=""):
        e = self.e; v = self.v
        e(f"  ds_write_b32 {v('aR32w')}, {v('G',0)} offset:{lred}")
        if fill: e(fill)
        e(f"  s_waitcnt lgkmcnt(0)\n  s_barrier\n  ds_read_b128 {v('G',0,4)}, {v('aR32r')} offset:{lred}\n  s_waitcnt lgkmcnt(0)")
        e(f"  v_pk_add_f32 {v('G',0,2)}, {v('G',0,2)}, {v('G',2,2)}\n  v_add_f32 {v('G',0)}, {v('G',0)}, {v('G',1)}")
    def distribute(self, val, addr, n, cs=False):
        e = self.e; v = self.v; t0 = v('t0')
        e(f"  s_nop 1\n  v_mov_b32_dpp {t0}, {val} quad_perm:[1,1,3,3] row_mask:0xf bank_mask:0xf")
        e(f"  v_cvt_pk_bf16_f32 {t0}, {val}, {t0}")
        if cs: e(f"  v_cndmask_b32 {t0}, {t0}, {v('ones')}, s[90:91]")
        for u in range(n): e(f"  ds_bpermute_b32 {v('P',u)}, {addr}, {t0} offset:{8*u}")
        e("  s_waitcnt lgkmcnt(0)")

    def fix_codepf(self):
        v = self.v
        i = self.l.index("CODEPF")
        if not self.codepf:
            self.l[i] = ""; return
        txt = f"""  s_getpc_b64 s[84:85]
L_PCREF:
  s_and_b32 s85, s85, 0xffff
  s_mov_b32 s86, CODE_BYTES
  s_mov_b32 s87, 0x20000
  v_lshlrev_b32 {v('t1')}, 4, v0
  buffer_load_dwordx4 {v('DL',0,4)}, {v('t1')}, s[84:87], 0 offen
  s_mov_b32 s4, 4096
  buffer_load_dwordx4 {v('DL',0,4)}, {v('t1')}, s[84:87], s4 offen
  s_mov_b32 s4, 8192
  buffer_load_dwordx4 {v('DL',0,4)}, {v('t1')}, s[84:87], s4 offen"""
        self.l[i:i+1] = txt.split("\n")
        self.vm = ["code"]*3 + self.vm
    def build(self):
        e = self.e; v = self.v; va = self.va
        self.stamps = []
        for n in ('lane','t0','t1','t2','t3','bad','tag','zero','ones','l16','offWO','offGU','offWD','offQ','offK','offVa','offVb',
                  'aRED1w','aRED1r','aQst','aH1','aQw','aQr','aMLw','aMLr','aPw','aPr','aV0','aV1','aOPst','aMLst','aH2','aH2ml','aBP2',
                  'aR32w','aR32r','aPD8','aPD8cs','aPD4','aWPst','aH3','xh','aGPst','aH4','aH4st','aR64w','aDPst','aH5','aOut',
                  'a1','a2','a3','a6','hres','prf'): va(n)
        va('a45', 2)
        self.vn['a4'] = ('v', self.vn['a45'][1], 1); self.vn['a5'] = ('v', self.vn['a45'][1]+1, 1)
        va('sel', 8); va('A', 8, 4); va('D', 8, 4); va('DL', 4, 4); va('G', 28, 4); va('GL', 4, 4); va('P', 4, 4)
        va('WQ', 32, 4); va('K', 16, 4); va('F', 16, 4)
        self.vn['WD'] = self.vn['WQ']
        self.aa('GU', 64); self.aa('WO', 32)
        self.init_prefetch()
        lane = v('lane'); t0 = v('t0'); t1 = v('t1'); t2 = v('t2'); t3 = v('t3')
        a1, a2, a3, a4, a5, a6 = [v(f'a{i}') for i in range(1, 7)]
        F = lambda i: v('F', i); G = lambda i: v('G', i)
        e(f"{KNAME}:")
        if self.prof: e("  s_memrealtime s[62:63]")
        e(f"""
  s_cmp_ge_u32 s2, 256
  s_cbranch_scc1 L_END
  s_load_dwordx2 s[{S_WQ}:{S_WQ+1}], s[0:1], 24
  s_load_dwordx2 s[{S_X}:{S_X+1}], s[0:1], 0
  s_load_dwordx2 s[{S_WS}:{S_WS+1}], s[0:1], 88
  s_load_dwordx2 s[{S_K}:{S_K+1}], s[0:1], 8
  s_load_dwordx2 s[{S_V}:{S_V+1}], s[0:1], 16
  v_lshrrev_b32 {t0}, 6, v0
  v_and_b32 {lane}, 63, v0
  s_mov_b32 s{S_WQ+2}, 0x800000
  v_readfirstlane_b32 s3, {t0}
CODEPF
  s_mov_b32 s{S_WQ+3}, 0x20000
  s_mov_b32 s{S_X+2}, 2048
  s_mov_b32 s{S_X+3}, 0x20000
  s_and_b32 s4, s2, 0xc0                 ; ks*64
  s_lshl_b32 s6, s4, 2                   ; ks*256
  s_lshl_b32 s7, s3, 6                   ; w*64
  s_add_u32 s6, s6, s7
  s_lshl_b32 s5, s6, 1
  s_lshl_b32 s6, s6, 13                  ; *8192
  s_and_b32 s7, s2, 63
  s_lshl_b32 s7, s7, 7
  s_add_u32 s6, s6, s7
  v_lshrrev_b32 {t0}, 3, {lane}          ; l>>3
  v_and_b32 {t1}, 7, {lane}              ; l&7
  v_lshlrev_b32 {v('offQ')}, 16, {t0}    ; (l>>3)*8*8192
  v_lshl_add_u32 {v('offQ')}, {t1}, 4, {v('offQ')}
  v_lshlrev_b32 {t2}, 4, {t0}
  v_lshlrev_b32 {t3}, 5, {lane}          ; l*32
  s_waitcnt lgkmcnt(0)
""")
        self.fix_codepf()
        for t in range(8):
            self.vmem(f"  buffer_load_dwordx4 {v('WQ',4*t,4)}, {v('offQ')}, {srd(S_WQ)}, s6 offen nt", "wq")
            if t < 7: e("  s_add_u32 s6, s6, 8192")
            if t == 0:
                self.vmem(f"  buffer_load_dwordx4 {v('G',0,4)}, {t3}, {srd(S_X)}, 0 offen", "x")
                self.vmem(f"  buffer_load_dwordx4 {v('G',4,4)}, {t3}, {srd(S_X)}, 0 offen offset:16", "x")
                self.vmem(f"  buffer_load_dwordx4 {v('P',0,4)}, {t2}, {srd(S_X)}, s5 offen", "x")
        e(f"""
  s_load_dwordx2 s[{S_WO}:{S_WO+1}], s[0:1], 32
  s_load_dwordx4 s[44:47], s[0:1], 48
  s_load_dwordx2 s[{S_WD}:{S_WD+1}], s[0:1], 64
  s_load_dwordx2 s[{S_OUT}:{S_OUT+1}], s[0:1], 72
  s_load_dword {sEPO}, s[{S_WS}:{S_WS+1}], 0          ; epoch
""")
        self.stamp("issued")
        e(f"""
  s_mov_b32 s{S_K+2}, 0x4000000
  s_mov_b32 s{S_K+3}, 0x20000
  s_mov_b32 s{S_V+2}, 0x4000000
  s_mov_b32 s{S_V+3}, 0x20000
  s_mov_b32 s{S_WS+2}, 0x10000000
  s_mov_b32 s{S_WS+3}, 0x20000
  s_mov_b32 s{S_WO+2}, 0x800000
  s_mov_b32 s{S_WO+3}, 0x20000
  s_mov_b32 s{S_OUT+2}, 2048
  s_mov_b32 s{S_OUT+3}, 0x20000
  s_mov_b32 {sFF}, 0xff
  s_mov_b32 {sMHI}, 0xffff0000
  s_mov_b32 {sSPIN}, {self.spin}
  s_mov_b32 s92, 0x3db504f3
  s_mov_b32 s93, 0x3db504f3
  s_mov_b32 s90, 0
  s_mov_b32 s91, -1
  v_mov_b32 {v('zero')}, 0
  v_mov_b32 {v('ones')}, 0x3f803f80
  s_and_b32 s94, s2, 7
  s_lshr_b32 s95, s2, 3                  ; j
  s_lshr_b32 s96, s94, 1                 ; g
  s_lshl_b32 s5, s95, 1
  s_and_b32 s6, s2, 1
  s_add_u32 s97, s5, s6                  ; split s
  s_lshr_b32 s4, s2, 4
  s_lshl_b32 s4, s4, 3
  s_add_u32 s98, s4, s94                 ; p
  s_and_b32 s99, s95, 1                  ; ch
  s_cmp_lt_u32 s95, 28
  s_cselect_b32 {sACT}, 1, 0
  s_min_u32 s5, s95, 27
  s_mul_i32 s6, s5, 37
  s_lshr_b32 s6, s6, 8                   ; j/7
  s_mul_i32 s7, s6, 7
  s_sub_u32 s100, s5, s7                 ; cb
  s_sub_u32 s7, s95, 28
  s_cmp_eq_u32 {sACT}, 0
  s_cselect_b32 s6, s7, s6
  s_lshl_b32 s7, s94, 2
  s_add_u32 s101, s7, s6                 ; kb
  s_mul_i32 s7, s94, 28
  s_add_u32 s55, s7, s5                  ; fb
  v_and_b32 {a1}, 15, {lane}             ; j16 = l&15
  v_lshrrev_b32 {a2}, 4, {lane}          ; g4  = l>>4
  v_and_b32 {a3}, 7, {lane}              ; l&7
  v_lshrrev_b32 {a4}, 3, {lane}          ; l>>3
  v_lshrrev_b32 {a5}, 5, {lane}          ; l>>5
  v_lshlrev_b32 {v('l16')}, 4, {lane}
  v_lshlrev_b32 {t2}, 4, {a1}            ; j16*16
  v_lshl_add_u32 {v('offWO')}, {a2}, 14, {t2}
  v_lshl_add_u32 {v('offWD')}, {a2}, 13, {t2}
  v_mul_u32_u24 {t3}, 57344, {a2}
  v_add_u32 {v('offGU')}, {t3}, {t2}
  v_lshlrev_b32 {v('offK')}, 8, {a1}
  v_lshl_add_u32 {v('offK')}, {a2}, 4, {v('offK')}
  v_lshlrev_b32 {t2}, 1, {a2}
  v_xor_b32 {t2}, {t2}, {a1}
  v_lshlrev_b32 {t2}, 4, {t2}
  v_lshl_add_u32 {v('offVa')}, {a2}, 8, {t2}
  v_xor_b32 {v('offVb')}, 128, {v('offVa')}
  ; selectors
  v_lshrrev_b32 {t1}, 1, {a3}            ; e>>1
  v_and_b32 {t2}, 1, {a3}                ; e&1
  v_mov_b32 {F(4)}, 0x0c0c0100
  v_mov_b32 {F(5)}, 0x01000c0c
  v_mov_b32 {F(6)}, 0x0c0c0302
  v_mov_b32 {F(7)}, 0x03020c0c
  v_cmp_eq_u32 vcc, 1, {t2}
  v_mov_b32 {F(8)}, 0x0c0c0c0c
  s_nop 0
  v_cndmask_b32 {F(4)}, {F(4)}, {F(5)}, vcc
  v_cndmask_b32 {F(6)}, {F(6)}, {F(7)}, vcc
""")
        for d in range(4):
            e(f"  v_cmp_eq_u32 vcc, {d}, {t1}\n  s_nop 1\n  v_cndmask_b32 {v('sel',2*d)}, {F(8)}, {F(4)}, vcc\n  v_cndmask_b32 {v('sel',2*d+1)}, {F(8)}, {F(6)}, vcc")
        e(f"""
  v_and_b32 {t1}, 1, {a4}
  v_cmp_eq_u32 vcc, {a5}, {t1}
  s_lshl_b32 s4, s3, 1
  v_add_u32 {t0}, s4, {a5}
  v_lshlrev_b32 {t0}, 8, {t0}
  v_lshl_add_u32 {t0}, {a3}, 5, {t0}
  v_and_b32 {t1}, 16, {lane}
  v_add_u32 {t0}, {t0}, {t1}
  v_add_u32 {t0}, {L_RED}, {t0}
  v_add_u32 {t1}, {L_JUNK}, {v('l16')}
  v_cndmask_b32 {v('aRED1w')}, {t1}, {t0}, vcc
  v_lshlrev_b32 {t1}, 9, {a2}
  v_lshl_add_u32 {v('aRED1r')}, {a1}, 4, {t1}
  s_lshr_b32 s4, s2, 6
  s_lshl_b32 s4, s4, 14
  s_and_b32 s5, s2, 63
  s_lshl_b32 s5, s5, 8
  s_add_u32 s4, s4, s5
  s_add_u32 s4, s4, {WS_QP}
  v_add_u32 {v('aQst')}, s4, {v('l16')}
  s_lshl_b32 s4, s96, 12
  s_add_u32 s4, s4, {WS_QP}
  v_lshlrev_b32 {t0}, 4, v0
  v_add_u32 {v('aH1')}, s4, {t0}
  v_lshrrev_b32 {t0}, 5, v0
  v_mul_u32_u24 {t0}, 272, {t0}
  v_and_b32 {t1}, 31, v0
  v_lshl_add_u32 {v('aQw')}, {t1}, 3, {t0}
  v_mul_u32_u24 {t0}, 272, {a3}
  v_lshl_add_u32 {v('aQr')}, {a2}, 4, {t0}
  v_lshlrev_b32 {v('aMLr')}, 4, {a1}
  s_lshl_b32 s4, s3, 2
  v_add_u32 {v('aMLw')}, s4, {v('aMLr')}
  ; P tile
  v_mul_u32_u24 {t2}, 144, {a1}
  v_lshl_add_u32 {t2}, {a2}, 3, {t2}
  s_lshl_b32 s4, s3, 5
  v_add_u32 {t2}, s4, {t2}
  v_add_u32 {t2}, {L_P}, {t2}
  v_add_u32 {t3}, {L_JUNK}, {v('l16')}
  v_cmp_gt_u32 vcc, 8, {a1}
  v_mul_u32_u24 {t0}, 144, {a3}
  v_lshl_add_u32 {v('aPr')}, {a2}, 4, {t0}
  v_cndmask_b32 {v('aPw')}, {t3}, {t2}, vcc
  v_lshrrev_b32 {t0}, 2, {a1}            ; m>>2
  v_lshl_add_u32 {t1}, {a2}, 3, {t0}     ; 8gk + (m>>2)
  v_lshlrev_b32 {t1}, 8, {t1}
  v_and_b32 {t2}, 3, {a1}
  v_lshrrev_b32 {t3}, 1, {t2}
  s_lshl_b32 s4, s3, 2
  v_add_u32 {t3}, s4, {t3}               ; chunk a=0
  v_and_b32 {t2}, 1, {t2}
  v_lshl_add_u32 {t1}, {t2}, 3, {t1}
  v_and_b32 {t2}, 1, {a2}
  v_lshlrev_b32 {t2}, 3, {t2}
  v_lshl_add_u32 {t2}, {t0}, 1, {t2}     ; swz
  v_xor_b32 {t0}, {t3}, {t2}
  v_lshl_add_u32 {v('aV0')}, {t0}, 4, {t1}
  v_add_u32 {t3}, 2, {t3}
  v_xor_b32 {t0}, {t3}, {t2}
  v_lshl_add_u32 {v('aV1')}, {t0}, 4, {t1}
  s_lshl_b32 s4, s96, 18
  s_lshl_b32 s5, s3, 13
  s_add_u32 s4, s4, s5
  s_lshl_b32 s5, s97, 7
  s_add_u32 s4, s4, s5
  s_add_u32 s4, s4, {WS_OP}
  v_lshlrev_b32 {t1}, 15, {a1}
  v_lshl_add_u32 {t1}, {a2}, 4, {t1}
  v_add_u32 {v('aOPst')}, s4, {t1}
  s_lshl_b32 s5, s96, 13
  s_lshl_b32 s6, s97, 4
  s_add_u32 s5, s5, s6
  s_add_u32 s5, s5, {WS_ML}
  v_lshlrev_b32 {t3}, 10, {a1}
  v_add_u32 {v('aMLst')}, s5, {t3}
  s_lshl_b32 s4, s98, 13
  s_lshl_b32 s5, s3, 11
  s_add_u32 s4, s4, s5
  s_add_u32 s4, s4, {WS_OP}
  v_add_u32 {v('aH2')}, s4, {v('l16')}
  s_lshr_b32 s5, s98, 2
  s_lshl_b32 s5, s5, 10
  s_add_u32 s5, s5, {WS_ML}
  v_add_u32 {v('aH2ml')}, s5, {v('l16')}
  s_lshl_b32 s4, s3, 4
  v_add_u32 {t0}, s4, {a4}
  v_lshlrev_b32 {v('aBP2')}, 2, {t0}
  v_lshlrev_b32 {t0}, 2, {a3}
  v_lshl_add_u32 {t0}, {a5}, 1, {t0}
  v_and_b32 {t1}, 1, {a2}
  v_add_u32 {t0}, {t0}, {t1}
  v_lshlrev_b32 {t0}, 4, {t0}
  s_lshl_b32 s4, s3, 2
  v_add_u32 {v('aR32w')}, s4, {t0}
  v_and_b32 {t0}, 31, {lane}
  v_lshlrev_b32 {v('aR32r')}, 4, {t0}
  v_lshlrev_b32 {t2}, 2, {a1}
  v_lshl_add_u32 {t2}, {a5}, 1, {t2}
  v_add_u32 {t2}, {t2}, {t1}
  v_lshlrev_b32 {t2}, 4, {t2}
  v_add_u32 {v('aR64w')}, s4, {t2}
  v_lshlrev_b32 {v('aPD8')}, 5, {a2}
  v_lshlrev_b32 {v('aPD4')}, 4, {a2}
  v_and_b32 {t1}, 8, {lane}
  v_cmp_ne_u32 vcc, 0, {t1}
  v_mov_b32 {t2}, 128
  s_nop 0
  v_cndmask_b32 {v('aPD8cs')}, {v('aPD8')}, {t2}, vcc
  v_lshrrev_b32 {t1}, 2, {a1}
  v_lshlrev_b32 {t2}, 14, {t1}
  v_and_b32 {t3}, 3, {a1}
  v_lshl_add_u32 {t2}, {t3}, 5, {t2}
  v_and_b32 {t0}, 16, {lane}
  v_add_u32 {t2}, {t2}, {t0}
  s_lshl_b32 s4, s99, 4
  s_lshl_b32 s5, s3, 2
  s_add_u32 s4, s4, s5
  s_lshl_b32 s4, s4, 14
  s_lshl_b32 s5, s98, 7
  s_add_u32 s4, s4, s5
  s_add_u32 s4, s4, {WS_WP}
  v_add_u32 {v('aWPst')}, s4, {t2}
  v_mul_u32_u24 {t2}, 28672, {t1}
  v_lshl_add_u32 {t2}, {t3}, 5, {t2}
  v_add_u32 {t2}, {t2}, {t0}
  s_mul_i32 s4, s3, {8*28672}
  s_lshl_b32 s5, s55, 7
  s_add_u32 s4, s4, s5
  s_add_u32 s4, s4, {WS_DP}
  v_add_u32 {v('aDPst')}, s4, {t2}
  s_lshl_b32 s4, s101, 14
  s_lshl_b32 s5, s3, 12
  s_add_u32 s4, s4, s5
  s_add_u32 s4, s4, {WS_WP}
  v_add_u32 {v('aH3')}, s4, {v('l16')}
  v_lshrrev_b32 {t1}, 1, {a1}
  v_lshlrev_b32 {t1}, 13, {t1}
  v_and_b32 {t2}, 1, {a1}
  v_lshl_add_u32 {t1}, {t2}, 5, {t1}
  v_add_u32 {t1}, {t1}, {t0}
  v_lshl_add_u32 {t1}, {a5}, 6, {t1}
  s_lshl_b32 s4, s100, 5
  s_and_b32 s5, s3, 1
  s_lshl_b32 s5, s5, 4
  s_add_u32 s4, s4, s5
  s_lshl_b32 s4, s4, 13
  s_lshl_b32 s5, s101, 8
  s_add_u32 s4, s4, s5
  s_lshr_b32 s5, s3, 1
  s_lshl_b32 s5, s5, 7
  s_add_u32 s4, s4, s5
  s_add_u32 s4, s4, {WS_GP}
  v_add_u32 {v('aGPst')}, s4, {t1}
  s_lshl_b32 s4, s55, 13
  s_lshl_b32 s5, s3, 11
  s_add_u32 s4, s4, s5
  s_add_u32 s4, s4, {WS_GP}
  v_add_u32 {v('aH4')}, s4, {v('l16')}
  v_add_u32 {v('aH4st')}, {WS_ST}, {v('aR32r')}
  s_mul_i32 s4, s101, 28672
  s_mul_i32 s5, s3, 7168
  s_add_u32 s4, s4, s5
  s_add_u32 s4, s4, {WS_DP}
  v_add_u32 {v('aH5')}, s4, {v('l16')}
  v_and_b32 {t0}, 31, {lane}
  v_lshlrev_b32 {t0}, 1, {t0}
  s_lshl_b32 s4, s101, 6
  v_add_u32 {v('aOut')}, s4, {t0}
""")
        self.vmem(f"  buffer_load_ushort {v('xh')}, {v('aOut')}, {srd(S_X)}, 0 offen", "xh")
        e(f"""
  s_waitcnt lgkmcnt(0)
  s_add_u32 {sEPO}, {sEPO}, 1
  s_and_b32 {sTAG}, {sEPO}, 0xff
  v_mov_b32 {v('tag')}, {sTAG}
  s_mul_i32 {sTAG32}, {sTAG}, 0x01010101
  s_cmp_ge_u32 s3, 2
  s_cselect_b32 s{S_GU}, s46, s44
  s_cselect_b32 s{S_GU+1}, s47, s45
  s_cmp_eq_u32 {sACT}, 0
  s_cselect_b32 s{S_GU+2}, 0, 0x700000
  s_cselect_b32 s{S_WD+2}, 0, 0x700000
  s_mov_b32 s{S_GU+3}, 0x20000
  s_mov_b32 s{S_WD+3}, 0x20000
  s_mov_b32 {sC16K}, 16384
  s_mov_b32 {sC32K}, 32768
  s_mov_b32 {sC48K}, 49152
  s_mov_b32 {sC64K}, 65536
  s_mov_b32 {sC4K}, 4096
  s_mov_b32 {sCDP}, {4*28672}
  s_lshl_b32 s4, s98, 16
  s_lshl_b32 s5, s99, 10
  s_add_u32 s4, s4, s5
  s_lshl_b32 s5, s3, 8
  s_add_u32 {sWO}, s4, s5
  s_mul_i32 s4, s101, 229376
  s_lshl_b32 s5, s100, 10
  s_add_u32 s4, s4, s5
  s_and_b32 s5, s3, 1
  s_lshl_b32 s5, s5, 9
  s_add_u32 {sGUo}, s4, s5
  s_lshl_b32 s4, s55, 15
  s_lshl_b32 s5, s3, 9
  s_add_u32 {sWDo}, s4, s5
  ; K/V soffset
  s_lshl_b32 s6, s96, 24
  s_lshl_b32 s7, s97, 6
  s_lshl_b32 s5, s3, 4
  s_add_u32 s7, s7, s5
  s_add_u32 s7, s7, 61440
  s_lshl_b32 s7, s7, 8
  s_add_u32 s88, s6, s7
""")
        self.stamp("pre")
        self.wait("x")
        for d in range(8):
            e(f"  v_lshlrev_b32 {F(2*d)}, 16, {G(d)}\n  v_and_b32 {F(2*d+1)}, {sMHI}, {G(d)}")
        for i in range(0, 8, 2): e(f"  v_pk_add_f32 {v('G',i,2)}, {v('F',2*i,2)}, {v('F',2*i+2,2)}")
        e(f"  v_pk_add_f32 {v('G',0,2)}, {v('G',0,2)}, {v('G',2,2)}\n  v_pk_add_f32 {v('G',4,2)}, {v('G',4,2)}, {v('G',6,2)}")
        e(f"  v_pk_add_f32 {v('G',0,2)}, {v('G',0,2)}, {v('G',4,2)}\n  v_add_f32 {a1}, {G(0)}, {G(1)}")
        self.allred16("v_add_f32", [a1]); self.allred_rows("v_add_f32", [a1], [t0])
        e(f"  v_mul_f32 {a1}, 0x3a800000, {a1}      ; mean")
        e(f"  v_sub_f32 {t0}, {F(0)}, {a1}\n  v_mul_f32 {a2}, {t0}, {t0}")
        for i in range(1, 16):
            e(f"  v_sub_f32 {t0}, {F(i)}, {a1}\n  v_fmac_f32 {a2}, {t0}, {t0}")
        self.allred16("v_add_f32", [a2]); self.allred_rows("v_add_f32", [a2], [t0])
        e(f"  v_mul_f32 {a2}, 0x3a800000, {a2}      ; var")
        self.bf16r(a1, a1); self.bf16r(a2, a2)
        e(f"  v_add_f32 {a2}, 0x3727c5ac, {a2}")
        self.bf16r(a2, a2)
        e(f"  v_sqrt_f32 {a2}, {a2}\n  s_nop 0")
        self.bf16r(a2, a2)
        e(f"  v_rcp_f32 {a3}, {a2}\n  s_nop 0")
        for d in range(4):
            e(f"  v_lshlrev_b32 {F(2*d)}, 16, {v('P',d)}\n  v_and_b32 {F(2*d+1)}, {sMHI}, {v('P',d)}")
        for i in range(8):
            e(f"  v_sub_f32 {F(i)}, {F(i)}, {a1}")
            self.bf16r(F(i), F(i))
            e(f"  v_mul_f32 {t0}, {F(i)}, {a3}\n  v_fma_f32 {t1}, -{t0}, {a2}, {F(i)}\n  v_fma_f32 {F(i)}, {t1}, {a3}, {t0}")
        for d in range(4): e(f"  v_cvt_pk_bf16_f32 {v('P',d)}, {F(2*d)}, {F(2*d+1)}")
        self.stamp("ln1")
        for u in range(4):
            self.vmem(f"  buffer_load_dwordx4 {v('K',4*u,4)}, {v('offK')}, {srd(S_K)}, s88 offen offset:{64*u} nt", "k")
        e(f"  s_lshl_b32 s5, s3, 12")
        for t in range(4):
            e(f"  s_add_u32 s6, s5, {L_V + 1024*t}\n  s_mov_b32 m0, s6\n  s_add_u32 s7, s88, {1024*t}")
            self.vmem(f"  buffer_load_dwordx4 {v('offVa') if t < 2 else v('offVb')}, {srd(S_V)}, s7 offen nt lds", "v")
        self.prefetch("start")
        if self.setprio: e(f"  s_setprio {self.setprio}")
        self.gemv("WQ", 8, 1, "wq")
        self.stamp("p1mfma")
        e(f"  ds_write_b128 {v('aRED1w')}, {v('D',0,4)}\n  s_waitcnt lgkmcnt(0)\n  s_barrier")
        lab = self.label("p1skip")
        e(f"""
  s_cmp_lg_u32 s3, 0
  s_cbranch_scc1 {lab}
  ds_read_b128 {v('G',0,4)}, {v('aRED1r')} offset:{L_RED}
  ds_read_b128 {v('G',4,4)}, {v('aRED1r')} offset:{L_RED+256}
  s_waitcnt lgkmcnt(0)
  v_pk_add_f32 {v('G',0,2)}, {v('G',0,2)}, {v('G',4,2)}
  v_pk_add_f32 {v('G',2,2)}, {v('G',2,2)}, {v('G',6,2)}
""")
        self.allred_rows("v_add_f32", [G(0), G(1), G(2), G(3)], [F(0), F(1), F(2), F(3)])
        self.tag('G', 0, rn=True)
        e(f"  s_mov_b64 exec, 0xffff\n  buffer_store_dwordx4 {v('G',0,4)}, {v('aQst')}, {srd(S_WS)}, 0 offen sc1\n  s_mov_b64 exec, -1\n{lab}:")
        self.stamp("qpub")
        self.prefetch("after_q")
        so = ["0", sC16K, sC32K, sC48K]
        loads = [f"  buffer_load_dwordx4 {v('G',4*k,4)}, {v('aH1')}, {srd(S_WS)}, {so[k]} offen sc1" for k in range(4)]
        self.poll("hop1", loads, [('G',4*k) for k in range(4)], lambda: self.prefetch("in_hop1"), xor=True)
        self.stamp("hop1")
        self.pk_sum('G', [0, 1, 2, 3])
        e(f"""
  v_cvt_pk_bf16_f32 {G(0)}, {G(0)}, {G(1)}
  v_cvt_pk_bf16_f32 {G(1)}, {G(2)}, {G(3)}
  ds_write_b64 {v('aQw')}, {v('G',0,2)} offset:{L_Q}
  s_waitcnt lgkmcnt(0)
  s_barrier
""")
        for u in range(4): e(f"  ds_read_b128 {v('G',4*u,4)}, {v('aQr')} offset:{L_Q+64*u}")
        self.wait("k", " lgkmcnt(0)")
        D0 = v('D',0,4)
        for u in range(4):
            e(f"  v_mfma_f32_16x16x32_bf16 {D0}, {v('K',4*u,4)}, {v('G',4*u,4)}, {'0' if u == 0 else D0}")
        e("  s_nop 7")
        D = lambda i: v('D', i)
        e(f"""
  v_cvt_pk_bf16_f32 {t0}, {D(0)}, {D(1)}
  v_cvt_pk_bf16_f32 {t1}, {D(2)}, {D(3)}
  v_lshlrev_b32 {D(0)}, 16, {t0}
  v_and_b32 {D(1)}, {sMHI}, {t0}
  v_lshlrev_b32 {D(2)}, 16, {t1}
  v_and_b32 {D(3)}, {sMHI}, {t1}
  v_pk_mul_f32 {v('D',0,2)}, {v('D',0,2)}, {sSCALE}
  v_pk_mul_f32 {v('D',2,2)}, {v('D',2,2)}, {sSCALE}
  v_cvt_pk_bf16_f32 {t0}, {D(0)}, {D(1)}
  v_cvt_pk_bf16_f32 {t1}, {D(2)}, {D(3)}
  v_lshlrev_b32 {D(0)}, 16, {t0}
  v_and_b32 {D(1)}, {sMHI}, {t0}
  v_lshlrev_b32 {D(2)}, 16, {t1}
  v_and_b32 {D(3)}, {sMHI}, {t1}
  v_max_f32 {a1}, {D(0)}, {D(1)}
  v_max3_f32 {a1}, {D(2)}, {D(3)}, {a1}
""")
        self.allred_rows("v_max_f32", [a1], [t0])
        e(f"""
  ds_write_b32 {v('aMLw')}, {a1} offset:{L_ML}
  s_waitcnt lgkmcnt(0)
  s_barrier
  ds_read_b128 {v('G',0,4)}, {v('aMLr')} offset:{L_ML}
  s_waitcnt lgkmcnt(0)
  v_max_f32 {a1}, {G(0)}, {G(1)}
  v_max3_f32 {a1}, {G(2)}, {G(3)}, {a1}        ; M[head]
  v_mul_f32 {a2}, 0x3fb8aa3b, {a1}
  v_mov_b32 {t0}, 0x3fb8aa3b
""")
        for r in range(4): e(f"  v_fma_f32 {D(r)}, {D(r)}, {t0}, -{a2}")
        for r in range(4): e(f"  v_exp_f32 {D(r)}, {D(r)}")
        e(f"""
  s_nop 0
  v_cvt_pk_bf16_f32 {G(0)}, {D(0)}, {D(1)}
  v_cvt_pk_bf16_f32 {G(1)}, {D(2)}, {D(3)}
  ds_write_b64 {v('aPw')}, {v('G',0,2)}
""")
        for d in range(4): e(f"  v_mov_b32 {v('A',d)}, {v('ones')}")
        self.wait("v", " lgkmcnt(0)")
        e(f"""
  s_barrier
  ds_read_b128 {v('G',0,4)}, {v('aPr')} offset:{L_P}
  ds_read_b128 {v('G',4,4)}, {v('aPr')} offset:{L_P+64}
""")
        for a, ad in ((0, v('aV0')), (1, v('aV1'))):
            for u in range(2):
                for hh in range(2):
                    e(f"  ds_read_b64_tr_b16 {v('F', 8*a+4*u+2*hh, 2)}, {ad} offset:{L_V + 8192*u + 1024*hh}")
        e("  s_waitcnt lgkmcnt(0)")
        DL = v('DL',0,4)
        e(f"  v_mfma_f32_16x16x32_bf16 {DL}, {v('A',0,4)}, {v('G',0,4)}, 0")
        for a in range(2):
            e(f"  v_mfma_f32_16x16x32_bf16 {v('D',4*a,4)}, {v('F',8*a,4)}, {v('G',0,4)}, 0")
        e(f"  v_mfma_f32_16x16x32_bf16 {DL}, {v('A',0,4)}, {v('G',4,4)}, {DL}")
        for a in range(2):
            e(f"  v_mfma_f32_16x16x32_bf16 {v('D',4*a,4)}, {v('F',8*a+4,4)}, {v('G',4,4)}, {v('D',4*a,4)}")
        e(f"""
  v_mov_b32 {v('GL',0)}, {a1}
  v_mov_b32 {v('GL',2)}, {a1}
  s_nop 4
  v_mov_b32 {v('GL',1)}, {v('DL',0)}
  v_mov_b32 {v('GL',3)}, {v('DL',0)}
""")
        self.tag('D', 0, 8)
        e(f"  s_mov_b32 exec_lo, 0x00ff00ff\n  s_mov_b32 exec_hi, 0x00ff00ff")
        self.vmem(f"  buffer_store_dwordx4 {v('D',0,4)}, {v('aOPst')}, {srd(S_WS)}, 0 offen sc1", "st")
        self.vmem(f"  buffer_store_dwordx4 {v('D',4,4)}, {v('aOPst')}, {srd(S_WS)}, 0 offen offset:64 sc1", "st")
        lab = self.label("mlskip")
        e(f"  s_mov_b64 exec, 0xff\n  s_cmp_lg_u32 s3, 0\n  s_cbranch_scc1 {lab}")
        self.tag('GL', 0)
        e(f"  buffer_store_dwordx4 {v('GL',0,4)}, {v('aMLst')}, {srd(S_WS)}, 0 offen sc1")
        e(f"{lab}:\n  s_mov_b64 exec, -1")
        self.stamp("opub")
        self.prefetch("after_o")
        loads = [f"  buffer_load_dwordx4 {v('GL',0,4)}, {v('aH2ml')}, {srd(S_WS)}, 0 offen sc1",
                 f"  buffer_load_dwordx4 {v('G',0,4)}, {v('aH2')}, {srd(S_WS)}, 0 offen sc1",
                 f"  buffer_load_dwordx4 {v('G',4,4)}, {v('aH2')}, {srd(S_WS)}, 0 offen offset:1024 sc1"]
        self.poll("hop2", loads, [('GL',0), ('G',0), ('G',4)], lambda: self.prefetch("in_hop2"))
        self.stamp("hop2")
        GL = lambda i: v('GL', i)
        e(f"""
  v_and_b32 {GL(0)}, {sMHI}, {GL(0)}
  ds_bpermute_b32 {a4}, {v('aBP2')}, {GL(0)}
  ds_bpermute_b32 {a5}, {v('aBP2')}, {GL(0)} offset:32
  v_mov_b32 {a1}, {GL(0)}
""")
        self.allred16("v_max_f32", [a1]); self.allred_rows("v_max_f32", [a1], [t0])
        e(f"""
  v_mov_b32 {t2}, 0x3fb8aa3b
  v_mul_f32 {a1}, {a1}, {t2}             ; M*c
  s_waitcnt lgkmcnt(0)
  v_fma_f32 {a2}, {GL(0)}, {t2}, -{a1}
  v_fma_f32 {a4}, {a4}, {t2}, -{a1}
  v_fma_f32 {a5}, {a5}, {t2}, -{a1}
  v_exp_f32 {a2}, {a2}
  v_exp_f32 {a4}, {a4}
  v_exp_f32 {a5}, {a5}
  v_mul_f32 {a3}, {a2}, {GL(1)}          ; w_s * l_s
""")
        for i in range(0, 4, 2):
            e(f"  v_pk_mul_f32 {v('G',i,2)}, {v('G',i,2)}, {v('a45',0,2)} op_sel_hi:[1,0]")
        for i in range(0, 4, 2):
            e(f"  v_pk_fma_f32 {v('G',i,2)}, {v('G',4+i,2)}, {v('a45',0,2)}, {v('G',i,2)} op_sel:[0,1,0] op_sel_hi:[1,1,1]")
        dpp = lambda m: f"  v_add_f32_dpp {a3}, {a3}, {a3} {m} row_mask:0xf bank_mask:0xf"
        e(dpp(self.DPP16[0]))
        e(f"""
  s_nop 0
  v_permlane32_swap_b32 {G(0)}, {G(2)}
  v_permlane32_swap_b32 {G(1)}, {G(3)}
{dpp(self.DPP16[1])}
  v_add_f32 {G(0)}, {G(0)}, {G(2)}
  v_add_f32 {G(1)}, {G(1)}, {G(3)}
{dpp(self.DPP16[2])}
  s_nop 0
  v_permlane16_swap_b32 {G(0)}, {G(1)}
  v_add_f32 {G(0)}, {G(0)}, {G(1)}
{dpp(self.DPP16[3])}
  s_nop 0
  v_add_f32_dpp {G(0)}, {G(0)}, {G(0)} row_ror:8 row_mask:0xf bank_mask:0xf
""")
        fill = []
        for k in (16, 32):
            fill.append(f"  v_mov_b32 {t0}, {a3}\n  s_nop 1\n  v_permlane{k}_swap_b32 {a3}, {t0}\n  v_add_f32 {a3}, {a3}, {t0}")
        fill.append(f"  v_rcp_f32 {a3}, {a3}")
        self.reduce32_tail(L_RED, fill="\n".join(fill))
        e(f"  v_mul_f32 {a1}, {G(0)}, {a3}")
        self.distribute(a1, v('aPD8'), 4)
        self.prefetch_until("wo")
        self.prefetch("pre_p3")
        self.gemv("WO", 8, 1, "wo")
        self.tag('D', 0)
        e("  s_mov_b32 exec_hi, 0")
        self.vmem(f"  buffer_store_dwordx4 {v('D',0,4)}, {v('aWPst')}, {srd(S_WS)}, 0 offen sc1", "st")
        e("  s_mov_b64 exec, -1")
        self.stamp("wpub")
        self.prefetch("after_w")
        loads = [f"  buffer_load_dwordx4 {v('G',4*k,4)}, {v('aH3')}, {srd(S_WS)}, 0 offen offset:{1024*k} sc1" for k in range(4)]
        self.poll("hop3", loads, [('G',4*k) for k in range(4)], lambda: self.prefetch("in_hop3"))
        self.stamp("hop3")
        self.pk_sum('G', [0, 1, 2, 3])
        self.scatter4([G(0), G(1), G(2), G(3)])
        e(f"  s_nop 1\n  v_add_f32_dpp {G(0)}, {G(0)}, {G(0)} row_ror:8 row_mask:0xf bank_mask:0xf")
        self.reduce32_tail(L_RED2, fill=f"  v_lshlrev_b32 {v('xh')}, 16, {v('xh')}")
        self.bf16r(a1, G(0))
        e(f"  v_add_f32 {a1}, {a1}, {v('xh')}")
        self.bf16r(a1, a1)
        e(f"  s_cmp_eq_u32 {sACT}, 0\n  s_cbranch_scc1 L_SPARE")
        vm_at_branch = list(self.vm)
        self.distribute(a1, v('aPD8cs'), 4, cs=True)
        self.prefetch_until("gu")
        self.prefetch("pre_p4")
        self.gemv("GU", 8, 2, "gu")
        self.tag('D', 0, 8)
        self.vmem(f"  buffer_store_dwordx4 {v('D',0,4)}, {v('aGPst')}, {srd(S_WS)}, 0 offen sc1", "st")
        self.vmem(f"  buffer_store_dwordx4 {v('D',4,4)}, {v('aGPst')}, {srd(S_WS)}, {sC64K} offen sc1", "st")
        self.stamp("gpub")
        self.prefetch("after_g")
        loads = [f"  buffer_load_dwordx4 {v('GL',0,4)}, {v('aH4st')}, {srd(S_WS)}, 0 offen sc1",
                 f"  buffer_load_dwordx4 {v('G',0,4)}, {v('aH4')}, {srd(S_WS)}, 0 offen sc1",
                 f"  buffer_load_dwordx4 {v('G',4,4)}, {v('aH4')}, {srd(S_WS)}, 0 offen offset:1024 sc1"]
        self.poll("hop4", loads, [('GL',0), ('G',0), ('G',4)], lambda: self.prefetch("in_hop4"))
        self.stamp("hop4")
        self.pk_sum('G', [0, 1])
        self.scatter4([G(0), G(1), G(2), G(3)])
        e(f"  ds_write_b32 {v('aR64w')}, {G(0)} offset:{L_RED}")
        self.allred16("v_add_f32", [GL(0), GL(1)])
        self.allred_rows("v_add_f32", [GL(0), GL(1)], [t0, t1], which=(16,))
        e(f"""
  v_mul_f32 {a2}, 0x3a800000, {GL(0)}    ; mean
  v_mul_f32 {a3}, 0x3a800000, {GL(1)}    ; E[h^2]
  v_fma_f32 {a3}, -{a2}, {a2}, {a3}      ; var
  v_max_f32 {a3}, 0, {a3}
  v_cvt_pk_bf16_f32 {t0}, {a2}, {a3}
  v_lshlrev_b32 {a2}, 16, {t0}           ; bf16(mean)
  v_and_b32 {a3}, {sMHI}, {t0}           ; bf16(var)
  v_add_f32 {a3}, 0x3727c5ac, {a3}
""")
        self.bf16r(a3, a3)
        e(f"  v_sqrt_f32 {a3}, {a3}\n  s_waitcnt lgkmcnt(0)\n  s_barrier\n  ds_read_b128 {v('G',0,4)}, {v('l16')} offset:{L_RED}")
        self.bf16r(a3, a3)
        e(f"""
  v_rcp_f32 {a4}, {a3}
  s_waitcnt lgkmcnt(0)
  v_pk_add_f32 {v('G',0,2)}, {v('G',0,2)}, {v('G',2,2)}
  v_add_f32 {a1}, {G(0)}, {G(1)}
  v_mov_b32 {a5}, {a1}
  s_nop 1
  v_permlane16_swap_b32 {a1}, {a5}
  v_fma_f32 {a1}, -{a2}, {a5}, {a1}
  v_mul_f32 {t0}, {a1}, {a4}
  v_fma_f32 {t1}, -{t0}, {a3}, {a1}
  v_fma_f32 {a1}, {t1}, {a4}, {t0}       ; / std
""")
        self.bf16r(a1, a1)
        e(f"""
  v_mov_b32 {a5}, {a1}
  s_nop 1
  v_permlane32_swap_b32 {a1}, {a5}
  v_max_f32 {a1}, 0, {a1}
  v_mul_f32 {a1}, {a1}, {a5}
""")
        self.distribute(a1, v('aPD4'), 2)
        self.prefetch_until("wd")
        self.gemv("WD", 4, 2, "wd")
        self.tag('D', 0, 8)
        e("  s_mov_b32 exec_hi, 0")
        self.vmem(f"  buffer_store_dwordx4 {v('D',0,4)}, {v('aDPst')}, {srd(S_WS)}, 0 offen sc1", "st")
        self.vmem(f"  buffer_store_dwordx4 {v('D',4,4)}, {v('aDPst')}, {srd(S_WS)}, {sCDP} offen sc1", "st")
        self.stamp("dpub")
        if self.prof:
            k = self.nstamp
            e(f"  s_memrealtime s[{64+2*k}:{65+2*k}]\n  s_memrealtime s[{66+2*k}:{67+2*k}]")
            e("  s_branch L_PROF")
        else:
            e("  s_endpgm")
        e("L_SPARE:")
        self.vm = vm_at_branch
        e(f"  v_mov_b32 {v('hres')}, {a1}\n  v_mov_b32 {GL(0)}, {a1}\n  v_mul_f32 {GL(1)}, {a1}, {a1}")
        self.allred16("v_add_f32", [GL(0), GL(1)])
        self.allred_rows("v_add_f32", [GL(0), GL(1)], [t0, t1], which=(16,))
        e(f"  v_mov_b32 {GL(2)}, {GL(0)}\n  v_mov_b32 {GL(3)}, {GL(1)}")
        self.tag('GL', 0)
        lab = self.label("stskip")
        e(f"""
  s_cmp_lg_u32 s3, 0
  s_cbranch_scc1 {lab}
  s_lshl_b32 s4, s101, 4
  s_add_u32 s4, s4, {WS_ST}
  s_mov_b64 exec, 1
  buffer_store_dwordx4 {v('GL',0,4)}, {v('zero')}, {srd(S_WS)}, s4 offen sc1
  s_mov_b64 exec, -1
{lab}:
""")
        if self.prof:
            for k in range(self.stamps.index("gpub"), self.stamps.index("dpub")+1):
                e(f"  s_memrealtime s[{64+2*k}:{65+2*k}]")
        e("  s_waitcnt vmcnt(0)")
        g5 = self.gates.get("pre5")
        self.vm = []
        loads = [f"  buffer_load_dwordx4 {v('G',24,4)}, {v('aH5')}, {srd(S_WS)}, {sC4K} offen offset:2048 sc1"]
        sr = self.sleep_retry; self.sleep_retry = self.gates.get("pre5sleep", 4)
        self.poll("pre5", loads, [('G',24)])
        self.sleep_retry = sr
        loads = [f"  buffer_load_dwordx4 {v('G',4*k,4)}, {v('aH5')}, {srd(S_WS)}, {'0' if k < 4 else sC4K} offen offset:{1024*(k%4)} sc1" for k in range(6)]
        self.poll("hop5", loads, [('G',4*k) for k in range(6)])
        self.stamp("hop5")
        self.pk_sum('G', list(range(7)))
        self.scatter4([G(0), G(1), G(2), G(3)])
        e(f"  s_nop 1\n  v_add_f32_dpp {G(0)}, {G(0)}, {G(0)} row_ror:8 row_mask:0xf bank_mask:0xf")
        self.reduce32_tail(L_RED)
        self.bf16r(a1, G(0))
        e(f"""
  v_add_f32 {a1}, {a1}, {v('hres')}
  s_nop 1
  v_mov_b32_dpp {t0}, {a1} quad_perm:[1,1,3,3] row_mask:0xf bank_mask:0xf
  v_cvt_pk_bf16_f32 {t0}, {a1}, {t0}
  s_cmp_lg_u32 s3, 0
  s_cbranch_scc1 L_FIN
  s_mov_b32 exec_lo, 0x55555555
  s_mov_b32 exec_hi, 0
  buffer_store_dword {t0}, {v('aOut')}, {srd(S_OUT)}, 0 offen
  s_cmp_lg_u32 s101, 0
  s_cbranch_scc1 L_FIN
  s_mov_b64 exec, 1
  v_mov_b32 {t1}, {sEPO}
  buffer_store_dword {t1}, {v('zero')}, {srd(S_WS)}, 0 offen sc1
L_FIN:
""")
        self.stamp("end")
        if self.prof:
            e(f"""
L_PROF:
  s_waitcnt lgkmcnt(0)
  s_lshl_b32 s4, s2, 2
  s_add_u32 s4, s4, s3
  s_lshl_b32 s4, s4, 7
  s_add_u32 s4, s4, {WS_PROF}
  s_mov_b64 exec, 1
  v_mov_b32 {t1}, s62
  buffer_store_dword {t1}, {v('zero')}, {srd(S_WS)}, s4 offen
""")
            for k in range(self.nstamp):
                e(f"  s_nop 1\n  v_mov_b32 {t1}, s{64+2*k}\n  buffer_store_dword {t1}, {v('zero')}, {srd(S_WS)}, s4 offen offset:{4+4*k}")
            e(f"  s_mov_b64 exec, 0xff\n  v_lshlrev_b32 {t0}, 2, {lane}\n  buffer_store_dword {v('prf')}, {t0}, {srd(S_WS)}, s4 offen offset:64")
        e("L_END:\n  s_endpgm")
        e("L_CODE_END:")
        return self

def emit(path, **kw):
    g = Gen(**kw).build()
    body = "\n".join(g.l)
    nv = (g.vnext + 3)//4*4
    tot = nv + g.anext
    txt = HDR + f"; @launch grid=(256,1,1) block=(256,1,1) lds={LDS_BYTES}\n"
    txt += f""".amdgcn_target "amdgcn-amd-amdhsa--gfx950"
.text
.globl {KNAME}
.p2align 8
.type {KNAME},@function
.set CODE_BYTES, L_CODE_END - L_PCREF
{body}
.section .rodata,"a"
.p2align 6
.amdhsa_kernel {KNAME}
  .amdhsa_next_free_vgpr {tot}
  .amdhsa_next_free_sgpr 102
  .amdhsa_accum_offset {nv}
  .amdhsa_group_segment_fixed_size 0
  .amdhsa_kernarg_size 96
  .amdhsa_user_sgpr_count 2
  .amdhsa_user_sgpr_kernarg_segment_ptr 1
  .amdhsa_system_sgpr_workgroup_id_x 1
.end_amdhsa_kernel
"""
    if not kw.get("codepf", True): txt = txt.replace(".set CODE_BYTES, L_CODE_END - L_PCREF\n", "")
    open(path, "w").write(txt)
    return g
DEFAULT_SCHED = dict(start=0, after_q=2, in_hop1=6, after_o=4, in_hop2=6, pre_p3=0, after_w=4, in_hop3=6, pre_p4=2, after_g=2, in_hop4=0)
DEFAULT_GATES = dict(hop1=12, hop2=12, hop3=12, hop4=12)
if __name__ == "__main__":
    import json
    kw = json.loads(sys.argv[2]) if len(sys.argv) > 2 else {}
    kw.setdefault("sched", DEFAULT_SCHED); kw.setdefault("gates", DEFAULT_GATES)
    g = emit(sys.argv[1], **kw)
    print("vgprs", g.vnext, "agprs", g.anext, "lines", len(g.l), "stamps", g.stamps)
```

```python
import sys
KNAME = "sequential_preLN__sliding_block_cached__glu_gated_reglu__decode_kernel"
HDR = """; Kernarg layout for this problem (96 bytes, ptrs only, base s[0:1]):
"""
WS_QP   = 0x10000
WS_ML   = 0x20000
WS_ST   = 0x28000
WS_OP   = 0x100000
WS_WP   = 0x200000
WS_GP   = 0x280000
WS_DP   = 0x480000
WS_PROF = 0x800000
L_V    = 0
L_RED  = 16384
L_JUNK = 18432
L_Q    = 19456
L_P    = 21760
L_ML   = 23040
L_RED2 = 23552
LDS_BYTES = 98304
S_WQ, S_K, S_V, S_WO, S_GU, S_WD, S_X, S_OUT, S_WS = 8, 12, 16, 20, 24, 28, 32, 36, 40
def srd(b): return f"s[{b}:{b+3}]"
sWO, sGUo, sWDo, sACT, sEPO = "s48", "s49", "s50", "s51", "s54"
sFF, sTAG32, sMHI, sSPIN, sTAG = "s56", "s57", "s60", "s61", "s59"
sC16K, sC32K, sC48K, sC64K, sC4K, sCDP = "s44", "s45", "s46", "s47", "s52", "s53"
sSCALE = "s[92:93]"

class Gen:
    def __init__(self, dbgwg=None, prof=False, sched=None, spin=1<<16, sleep_retry=2, gates=None, waitst=None, codepf=True, setprio=0):
        self.l = []; self.prof = prof; self.vnext = 1; self.anext = 0
        self.vn = {}; self.vm = []; self.nstamp = 0; self.lab = 0
        self.spin = spin; self.sleep_retry = sleep_retry
        self.sched = sched or {}; self.gates = gates or {}; self.waitst = waitst or {}
        self.codepf = codepf; self.setprio = setprio; self.dbgwg = dbgwg
    def e(self, s):
        for x in s.strip("\n").split("\n"): self.l.append(x)
    def label(self, base):
        self.lab += 1; return f"L_{base}_{self.lab}"
    def va(self, name, n=1, align=1):
        if n >= 2 and align < 2: align = 2
        if n >= 4: align = max(align, 4)
        p = (self.vnext + align - 1)//align*align
        self.vn[name] = ('v', p, n); self.vnext = p + n
        assert self.vnext <= 256, "out of vgprs"
    def aa(self, name, n):
        p = (self.anext + 3)//4*4
        self.vn[name] = ('a', p, n); self.anext = p + n
    def v(self, name, i=0, n=1):
        k, p, cnt = self.vn[name]
        assert i + n <= cnt, (name, i, n, cnt)
        return f"{k}{p+i}" if n == 1 else f"{k}[{p+i}:{p+i+n-1}]"
    def vmem(self, txt, tag): self.e(txt); self.vm.append(tag)
    def waitn(self, tag):
        idx = max(i for i, t in enumerate(self.vm) if t == tag)
        n = len(self.vm) - 1 - idx
        assert n <= 63
        return n
    def wait(self, tag, extra=""): self.e(f"  s_waitcnt vmcnt({self.waitn(tag)}){extra}")
    def stamp(self, name):
        if not self.prof: return
        k = self.nstamp; self.nstamp += 1
        assert k < 15
        self.e(f"  s_memrealtime s[{64+2*k}:{65+2*k}]")
        self.stamps.append(name)
    def bf16r(self, dst, src):
        self.e(f"  v_cvt_pk_bf16_f32 {dst}, {src}, {src}\n  v_and_b32 {dst}, {sMHI}, {dst}")
    DPP16 = ("quad_perm:[1,0,3,2]", "quad_perm:[2,3,0,1]", "row_half_mirror", "row_mirror")
    def allred16(self, op, vs):
        for m in self.DPP16:
            if len(vs) < 3: self.e("  s_nop 1" if len(vs) == 1 else "  s_nop 0")
            for v in vs: self.e(f"  {op}_dpp {v}, {v}, {v} {m} row_mask:0xf bank_mask:0xf")
    def allred_rows(self, op, vs, ts, which=(16, 32)):
        for k in which:
            for v, t in zip(vs, ts): self.e(f"  v_mov_b32 {t}, {v}")
            if len(vs) < 3: self.e("  s_nop 1" if len(vs) == 1 else "  s_nop 0")
            for v, t in zip(vs, ts): self.e(f"  v_permlane{k}_swap_b32 {v}, {t}")
            for v, t in zip(vs, ts): self.e(f"  {op} {v}, {v}, {t}")
    def scatter4(self, a, fill1="", fill2=""):
        self.e(fill1 if fill1 else "  s_nop 1")
        self.e(f"  v_permlane32_swap_b32 {a[0]}, {a[2]}\n  v_permlane32_swap_b32 {a[1]}, {a[3]}")
        self.e(f"  v_add_f32 {a[0]}, {a[0]}, {a[2]}\n  v_add_f32 {a[1]}, {a[1]}, {a[3]}")
        self.e(fill2 if fill2 else "  s_nop 1")
        self.e(f"  v_permlane16_swap_b32 {a[0]}, {a[1]}\n  v_add_f32 {a[0]}, {a[0]}, {a[1]}")
    def build_A(self, off, P, par):
        for d in range(4):
            self.e(f"  v_perm_b32 {self.v('A', off+d)}, {P}, {P}, {self.v('sel', 2*d+par)}")
    def check_tags(self, regs):
        v = self.v; bad = v('bad'); t0 = v('t0'); t1 = v('t1')
        for k, (name, off) in enumerate(regs):
            g = [v(name, off+i) for i in range(4)]
            if k == 0:
                self.e(f"  v_bitop3_b32 {bad}, {g[0]}, {g[1]}, {sTAG32} bitop3:0x7e")
                self.e(f"  v_bitop3_b32 {t1}, {g[2]}, {g[3]}, {sTAG32} bitop3:0x7e")
                self.e(f"  v_or_b32 {bad}, {bad}, {t1}")
            else:
                self.e(f"  v_bitop3_b32 {t0}, {g[0]}, {g[1]}, {sTAG32} bitop3:0x7e")
                self.e(f"  v_bitop3_b32 {t1}, {g[2]}, {g[3]}, {sTAG32} bitop3:0x7e")
                self.e(f"  v_or3_b32 {bad}, {t0}, {t1}, {bad}")
    def check_xor(self, regs):
        v = self.v; bad = v('bad')
        flat = [v(name, off+i) for (name, off) in regs for i in range(4)]
        for r in flat: self.e(f"  v_xor_b32 {r}, {sTAG}, {r}")
        self.e(f"  v_or3_b32 {bad}, {flat[0]}, {flat[1]}, {flat[2]}")
        i = 3
        while i + 1 < len(flat):
            self.e(f"  v_or3_b32 {bad}, {flat[i]}, {flat[i+1]}, {bad}"); i += 2
        if i < len(flat): self.e(f"  v_or_b32 {bad}, {bad}, {flat[i]}")
    def poll(self, name, loads, granules, after_first=None, xor=False, lanemask=None):
        v = self.v
        if self.waitst.get(name): self.wait("st")
        g = self.gates.get(name)
        if g: self.e(f"  s_sleep {g}")
        for s in loads: self.vmem(s, name)
        if after_first: after_first()
        self.wait(name)
        ok = self.label("ok"); rt = self.label("retry")
        chk = (lambda: self.check_xor(granules)) if xor else (lambda: self.check_tags(granules))
        def cmp():
            self.e(f"  v_cmp_ne_u32_sdwa vcc, {v('bad')}, {v('zero')} src0_sel:BYTE_0 src1_sel:DWORD")
        chk(); cmp()
        self.e(f"  s_cbranch_vccz {ok}")
        self.e(f"{rt}:")
        self.e(f"  s_sub_u32 {sSPIN}, {sSPIN}, 1\n  s_cbranch_scc1 L_END")
        if self.sleep_retry: self.e(f"  s_sleep {self.sleep_retry}")
        for s in loads: self.e(s)
        self.e("  s_waitcnt vmcnt(0)")
        chk(); cmp()
        self.e(f"  s_cbranch_vccnz {rt}")
        self.e(f"{ok}:")
        if self.prof:
            self.npoll = getattr(self, 'npoll', 0) + 1
            self.e(f"  v_writelane_b32 {v('prf')}, {sSPIN}, {self.npoll}")
    def tag(self, name, off, n=4, rn=False):
        for i in range(n):
            r = self.v(name, off+i)
            if rn: self.e(f"  v_add_u32 {r}, 0x80, {r}")
        for i in range(n):
            r = self.v(name, off+i)
            self.e(f"  v_bfi_b32 {r}, {sFF}, {self.v('tag')}, {r}")
    def init_prefetch(self):
        v = self.v; q = []
        for t in range(8):
            q.append(("wo", f"  buffer_load_dwordx4 {v('WO', 4*t, 4)}, {v('offWO')}, {srd(S_WO)}, {sWO} offen nt", sWO, 2048))
        for t in range(8):
            for a in range(2):
                q.append(("gu", f"  buffer_load_dwordx4 {v('GU', 8*t+4*a, 4)}, {v('offGU')}, {srd(S_GU)}, {sGUo} offen offset:{256*a} nt", sGUo if a == 1 else None, 7168))
        for t in range(4):
            for a in range(2):
                q.append(("wd", f"  buffer_load_dwordx4 {v('WD', 8*t+4*a, 4)}, {v('offWD')}, {srd(S_WD)}, {sWDo} offen offset:{256*a} nt", sWDo if a == 1 else None, 2048))
        self.pq = q; self.pqi = 0
    def prefetch(self, point): self.prefetch_n(self.sched.get(point, 0))
    def prefetch_n(self, n):
        for _ in range(n):
            if self.pqi >= len(self.pq): return
            tag, txt, sreg, step = self.pq[self.pqi]; self.pqi += 1
            self.vmem(txt, tag)
            if sreg: self.e(f"  s_add_u32 {sreg}, {sreg}, {step}")
    def prefetch_until(self, tag):
        while any(t == tag for (t, _, _, _) in self.pq[self.pqi:]): self.prefetch_n(1)
    def gemv(self, W, nt, ncol, tag, mid=None):
        e = self.e; v = self.v
        self.build_A(0, v('P', 0), 0)
        self.wait(tag)
        for t in range(nt):
            cur = 4*(t & 1); nxt = 4*((t+1) & 1)
            if t + 1 < nt: self.build_A(nxt, v('P', (t+1)//2), (t+1) & 1)
            elif ncol == 1: e("  s_nop 0")
            for a in range(ncol):
                Dd = v('D', 4*a, 4)
                e(f"  v_mfma_f32_16x16x32_bf16 {Dd}, {v('A', cur, 4)}, {v(W, (t*ncol+a)*4, 4)}, {'0' if t == 0 else Dd}")
        e(mid if mid else "  s_nop 7")
    def pk_sum(self, name, groups):
        v = self.v; g = list(groups)
        while len(g) > 1:
            n = []
            for i in range(0, len(g) - 1, 2):
                a, b = g[i], g[i+1]
                self.e(f"  v_pk_add_f32 {v(name,4*a,2)}, {v(name,4*a,2)}, {v(name,4*b,2)}\n  v_pk_add_f32 {v(name,4*a+2,2)}, {v(name,4*a+2,2)}, {v(name,4*b+2,2)}")
                n.append(a)
            if len(g) % 2: n.append(g[-1])
            g = n
    def reduce32_tail(self, lred, fill=""):
        e = self.e; v = self.v
        e(f"  ds_write_b32 {v('aR32w')}, {v('G',0)} offset:{lred}")
        if fill: e(fill)
        e(f"  s_waitcnt lgkmcnt(0)\n  s_barrier\n  ds_read_b128 {v('G',0,4)}, {v('aR32r')} offset:{lred}\n  s_waitcnt lgkmcnt(0)")
        e(f"  v_pk_add_f32 {v('G',0,2)}, {v('G',0,2)}, {v('G',2,2)}\n  v_add_f32 {v('G',0)}, {v('G',0)}, {v('G',1)}")
    def distribute(self, val, addr, n, cs=False):
        e = self.e; v = self.v; t0 = v('t0')
        e(f"  s_nop 1\n  v_mov_b32_dpp {t0}, {val} quad_perm:[1,1,3,3] row_mask:0xf bank_mask:0xf")
        e(f"  v_cvt_pk_bf16_f32 {t0}, {val}, {t0}")
        if cs: e(f"  v_cndmask_b32 {t0}, {t0}, {v('ones')}, s[90:91]")
        for u in range(n): e(f"  ds_bpermute_b32 {v('P',u)}, {addr}, {t0} offset:{8*u}")
        e("  s_waitcnt lgkmcnt(0)")

    def fix_codepf(self):
        v = self.v
        i = self.l.index("CODEPF")
        if not self.codepf:
            self.l[i] = ""; return
        txt = f"""  s_getpc_b64 s[84:85]
L_PCREF:
  s_and_b32 s85, s85, 0xffff
  s_mov_b32 s86, CODE_BYTES
  s_mov_b32 s87, 0x20000
  v_lshlrev_b32 {v('t1')}, 4, v0
  buffer_load_dwordx4 {v('DL',0,4)}, {v('t1')}, s[84:87], 0 offen
  s_mov_b32 s4, 4096
  buffer_load_dwordx4 {v('DL',0,4)}, {v('t1')}, s[84:87], s4 offen
  s_mov_b32 s4, 8192
  buffer_load_dwordx4 {v('DL',0,4)}, {v('t1')}, s[84:87], s4 offen"""
        self.l[i:i+1] = txt.split("\n")
        self.vm = ["code"]*3 + self.vm
    def build(self):
        e = self.e; v = self.v; va = self.va
        self.stamps = []
        for n in ('lane','t0','t1','t2','t3','bad','tag','zero','ones','l16','offWO','offGU','offWD','offQ','offK','offVa','offVb',
                  'aRED1w','aRED1r','aQst','aH1','aQw','aQr','aMLw','aMLr','aPw','aPr','aV0','aV1','aOPst','aMLst','aH2','aH2ml','aBP2',
                  'aR32w','aR32r','aPD8','aPD8cs','aPD4','aWPst','aH3','xh','aGPst','aH4','aH4st','aR64w','aDPst','aH5','aOut',
                  'a1','a2','a3','a6','hres','prf'): va(n)
        va('a45', 2)
        self.vn['a4'] = ('v', self.vn['a45'][1], 1); self.vn['a5'] = ('v', self.vn['a45'][1]+1, 1)
        va('sel', 8); va('A', 8, 4); va('D', 8, 4); va('DL', 4, 4); va('G', 28, 4); va('GL', 4, 4); va('P', 4, 4)
        va('WQ', 32, 4); va('K', 16, 4); va('F', 16, 4)
        self.vn['WD'] = self.vn['WQ']
        self.aa('GU', 64); self.aa('WO', 32)
        self.init_prefetch()
        lane = v('lane'); t0 = v('t0'); t1 = v('t1'); t2 = v('t2'); t3 = v('t3')
        a1, a2, a3, a4, a5, a6 = [v(f'a{i}') for i in range(1, 7)]
        F = lambda i: v('F', i); G = lambda i: v('G', i)
        e(f"{KNAME}:")
        if self.prof: e("  s_memrealtime s[62:63]")
        e(f"""
  s_cmp_ge_u32 s2, 256
  s_cbranch_scc1 L_END
  s_load_dwordx2 s[{S_WQ}:{S_WQ+1}], s[0:1], 24
  s_load_dwordx2 s[{S_X}:{S_X+1}], s[0:1], 0
  s_load_dwordx2 s[{S_WS}:{S_WS+1}], s[0:1], 88
  s_load_dwordx2 s[{S_K}:{S_K+1}], s[0:1], 8
  s_load_dwordx2 s[{S_V}:{S_V+1}], s[0:1], 16
  v_lshrrev_b32 {t0}, 6, v0
  v_and_b32 {lane}, 63, v0
  s_mov_b32 s{S_WQ+2}, 0x800000
  v_readfirstlane_b32 s3, {t0}
CODEPF
  s_mov_b32 s{S_WQ+3}, 0x20000
  s_mov_b32 s{S_X+2}, 2048
  s_mov_b32 s{S_X+3}, 0x20000
  s_and_b32 s4, s2, 0xc0                 ; ks*64
  s_lshl_b32 s6, s4, 2                   ; ks*256
  s_lshl_b32 s7, s3, 6                   ; w*64
  s_add_u32 s6, s6, s7
  s_lshl_b32 s5, s6, 1
  s_lshl_b32 s6, s6, 13                  ; *8192
  s_and_b32 s7, s2, 63
  s_lshl_b32 s7, s7, 7
  s_add_u32 s6, s6, s7
  v_lshrrev_b32 {t0}, 3, {lane}          ; l>>3
  v_and_b32 {t1}, 7, {lane}              ; l&7
  v_lshlrev_b32 {v('offQ')}, 16, {t0}    ; (l>>3)*8*8192
  v_lshl_add_u32 {v('offQ')}, {t1}, 4, {v('offQ')}
  v_lshlrev_b32 {t2}, 4, {t0}
  v_lshlrev_b32 {t3}, 5, {lane}          ; l*32
  s_waitcnt lgkmcnt(0)
""")
        self.fix_codepf()
        for t in range(8):
            self.vmem(f"  buffer_load_dwordx4 {v('WQ',4*t,4)}, {v('offQ')}, {srd(S_WQ)}, s6 offen nt", "wq")
            if t < 7: e("  s_add_u32 s6, s6, 8192")
            if t == 0:
                self.vmem(f"  buffer_load_dwordx4 {v('G',0,4)}, {t3}, {srd(S_X)}, 0 offen", "x")
                self.vmem(f"  buffer_load_dwordx4 {v('G',4,4)}, {t3}, {srd(S_X)}, 0 offen offset:16", "x")
                self.vmem(f"  buffer_load_dwordx4 {v('P',0,4)}, {t2}, {srd(S_X)}, s5 offen", "x")
        e(f"""
  s_load_dwordx2 s[{S_WO}:{S_WO+1}], s[0:1], 32
  s_load_dwordx4 s[44:47], s[0:1], 48
  s_load_dwordx2 s[{S_WD}:{S_WD+1}], s[0:1], 64
  s_load_dwordx2 s[{S_OUT}:{S_OUT+1}], s[0:1], 72
  s_load_dword {sEPO}, s[{S_WS}:{S_WS+1}], 0          ; epoch
""")
        self.stamp("issued")
        e(f"""
  s_mov_b32 s{S_K+2}, 0x4000000
  s_mov_b32 s{S_K+3}, 0x20000
  s_mov_b32 s{S_V+2}, 0x4000000
  s_mov_b32 s{S_V+3}, 0x20000
  s_mov_b32 s{S_WS+2}, 0x10000000
  s_mov_b32 s{S_WS+3}, 0x20000
  s_mov_b32 s{S_WO+2}, 0x800000
  s_mov_b32 s{S_WO+3}, 0x20000
  s_mov_b32 s{S_OUT+2}, 2048
  s_mov_b32 s{S_OUT+3}, 0x20000
  s_mov_b32 {sFF}, 0xff
  s_mov_b32 {sMHI}, 0xffff0000
  s_mov_b32 {sSPIN}, {self.spin}
  s_mov_b32 s92, 0x3db504f3
  s_mov_b32 s93, 0x3db504f3
  s_mov_b32 s90, 0
  s_mov_b32 s91, -1
  v_mov_b32 {v('zero')}, 0
  v_mov_b32 {v('ones')}, 0x3f803f80
  s_and_b32 s94, s2, 7
  s_lshr_b32 s95, s2, 3                  ; j
  s_lshr_b32 s96, s94, 1                 ; g
  s_lshl_b32 s5, s95, 1
  s_and_b32 s6, s2, 1
  s_add_u32 s97, s5, s6                  ; split s
  s_lshr_b32 s4, s2, 4
  s_lshl_b32 s4, s4, 3
  s_add_u32 s98, s4, s94                 ; p
  s_and_b32 s99, s95, 1                  ; ch
  s_cmp_lt_u32 s95, 28
  s_cselect_b32 {sACT}, 1, 0
  s_min_u32 s5, s95, 27
  s_mul_i32 s6, s5, 37
  s_lshr_b32 s6, s6, 8                   ; j/7
  s_mul_i32 s7, s6, 7
  s_sub_u32 s100, s5, s7                 ; cb
  s_sub_u32 s7, s95, 28
  s_cmp_eq_u32 {sACT}, 0
  s_cselect_b32 s6, s7, s6
  s_lshl_b32 s7, s94, 2
  s_add_u32 s101, s7, s6                 ; kb
  s_mul_i32 s7, s94, 28
  s_add_u32 s55, s7, s5                  ; fb
  v_and_b32 {a1}, 15, {lane}             ; j16 = l&15
  v_lshrrev_b32 {a2}, 4, {lane}          ; g4  = l>>4
  v_and_b32 {a3}, 7, {lane}              ; l&7
  v_lshrrev_b32 {a4}, 3, {lane}          ; l>>3
  v_lshrrev_b32 {a5}, 5, {lane}          ; l>>5
  v_lshlrev_b32 {v('l16')}, 4, {lane}
  v_lshlrev_b32 {t2}, 4, {a1}            ; j16*16
  v_lshl_add_u32 {v('offWO')}, {a2}, 14, {t2}
  v_lshl_add_u32 {v('offWD')}, {a2}, 13, {t2}
  v_mul_u32_u24 {t3}, 57344, {a2}
  v_add_u32 {v('offGU')}, {t3}, {t2}
  v_lshlrev_b32 {v('offK')}, 8, {a1}
  v_lshl_add_u32 {v('offK')}, {a2}, 4, {v('offK')}
  v_lshlrev_b32 {t2}, 1, {a2}
  v_xor_b32 {t2}, {t2}, {a1}
  v_lshlrev_b32 {t2}, 4, {t2}
  v_lshl_add_u32 {v('offVa')}, {a2}, 8, {t2}
  v_xor_b32 {v('offVb')}, 128, {v('offVa')}
  ; selectors
  v_lshrrev_b32 {t1}, 1, {a3}            ; e>>1
  v_and_b32 {t2}, 1, {a3}                ; e&1
  v_mov_b32 {F(4)}, 0x0c0c0100
  v_mov_b32 {F(5)}, 0x01000c0c
  v_mov_b32 {F(6)}, 0x0c0c0302
  v_mov_b32 {F(7)}, 0x03020c0c
  v_cmp_eq_u32 vcc, 1, {t2}
  v_mov_b32 {F(8)}, 0x0c0c0c0c
  s_nop 0
  v_cndmask_b32 {F(4)}, {F(4)}, {F(5)}, vcc
  v_cndmask_b32 {F(6)}, {F(6)}, {F(7)}, vcc
""")
        for d in range(4):
            e(f"  v_cmp_eq_u32 vcc, {d}, {t1}\n  s_nop 1\n  v_cndmask_b32 {v('sel',2*d)}, {F(8)}, {F(4)}, vcc\n  v_cndmask_b32 {v('sel',2*d+1)}, {F(8)}, {F(6)}, vcc")
        e(f"""
  v_and_b32 {t1}, 1, {a4}
  v_cmp_eq_u32 vcc, {a5}, {t1}
  s_lshl_b32 s4, s3, 1
  v_add_u32 {t0}, s4, {a5}
  v_lshlrev_b32 {t0}, 8, {t0}
  v_lshl_add_u32 {t0}, {a3}, 5, {t0}
  v_and_b32 {t1}, 16, {lane}
  v_add_u32 {t0}, {t0}, {t1}
  v_add_u32 {t0}, {L_RED}, {t0}
  v_add_u32 {t1}, {L_JUNK}, {v('l16')}
  v_cndmask_b32 {v('aRED1w')}, {t1}, {t0}, vcc
  v_lshlrev_b32 {t1}, 9, {a2}
  v_lshl_add_u32 {v('aRED1r')}, {a1}, 4, {t1}
  s_lshr_b32 s4, s2, 6
  s_lshl_b32 s4, s4, 14
  s_and_b32 s5, s2, 63
  s_lshl_b32 s5, s5, 8
  s_add_u32 s4, s4, s5
  s_add_u32 s4, s4, {WS_QP}
  v_add_u32 {v('aQst')}, s4, {v('l16')}
  s_lshl_b32 s4, s96, 12
  s_add_u32 s4, s4, {WS_QP}
  v_lshlrev_b32 {t0}, 4, v0
  v_add_u32 {v('aH1')}, s4, {t0}
  v_lshrrev_b32 {t0}, 5, v0
  v_mul_u32_u24 {t0}, 272, {t0}
  v_and_b32 {t1}, 31, v0
  v_lshl_add_u32 {v('aQw')}, {t1}, 3, {t0}
  v_mul_u32_u24 {t0}, 272, {a3}
  v_lshl_add_u32 {v('aQr')}, {a2}, 4, {t0}
  v_lshlrev_b32 {v('aMLr')}, 4, {a1}
  s_lshl_b32 s4, s3, 2
  v_add_u32 {v('aMLw')}, s4, {v('aMLr')}
  ; P tile
  v_mul_u32_u24 {t2}, 144, {a1}
  v_lshl_add_u32 {t2}, {a2}, 3, {t2}
  s_lshl_b32 s4, s3, 5
  v_add_u32 {t2}, s4, {t2}
  v_add_u32 {t2}, {L_P}, {t2}
  v_add_u32 {t3}, {L_JUNK}, {v('l16')}
  v_cmp_gt_u32 vcc, 8, {a1}
  v_mul_u32_u24 {t0}, 144, {a3}
  v_lshl_add_u32 {v('aPr')}, {a2}, 4, {t0}
  v_cndmask_b32 {v('aPw')}, {t3}, {t2}, vcc
  v_lshrrev_b32 {t0}, 2, {a1}            ; m>>2
  v_lshl_add_u32 {t1}, {a2}, 3, {t0}     ; 8gk + (m>>2)
  v_lshlrev_b32 {t1}, 8, {t1}
  v_and_b32 {t2}, 3, {a1}
  v_lshrrev_b32 {t3}, 1, {t2}
  s_lshl_b32 s4, s3, 2
  v_add_u32 {t3}, s4, {t3}               ; chunk a=0
  v_and_b32 {t2}, 1, {t2}
  v_lshl_add_u32 {t1}, {t2}, 3, {t1}
  v_and_b32 {t2}, 1, {a2}
  v_lshlrev_b32 {t2}, 3, {t2}
  v_lshl_add_u32 {t2}, {t0}, 1, {t2}     ; swz
  v_xor_b32 {t0}, {t3}, {t2}
  v_lshl_add_u32 {v('aV0')}, {t0}, 4, {t1}
  v_add_u32 {t3}, 2, {t3}
  v_xor_b32 {t0}, {t3}, {t2}
  v_lshl_add_u32 {v('aV1')}, {t0}, 4, {t1}
  s_lshl_b32 s4, s96, 18
  s_lshl_b32 s5, s3, 13
  s_add_u32 s4, s4, s5
  s_lshl_b32 s5, s97, 7
  s_add_u32 s4, s4, s5
  s_add_u32 s4, s4, {WS_OP}
  v_lshlrev_b32 {t1}, 15, {a1}
  v_lshl_add_u32 {t1}, {a2}, 4, {t1}
  v_add_u32 {v('aOPst')}, s4, {t1}
  s_lshl_b32 s5, s96, 13
  s_lshl_b32 s6, s97, 4
  s_add_u32 s5, s5, s6
  s_add_u32 s5, s5, {WS_ML}
  v_lshlrev_b32 {t3}, 10, {a1}
  v_add_u32 {v('aMLst')}, s5, {t3}
  s_lshl_b32 s4, s98, 13
  s_lshl_b32 s5, s3, 11
  s_add_u32 s4, s4, s5
  s_add_u32 s4, s4, {WS_OP}
  v_add_u32 {v('aH2')}, s4, {v('l16')}
  s_lshr_b32 s5, s98, 2
  s_lshl_b32 s5, s5, 10
  s_add_u32 s5, s5, {WS_ML}
  v_add_u32 {v('aH2ml')}, s5, {v('l16')}
  s_lshl_b32 s4, s3, 4
  v_add_u32 {t0}, s4, {a4}
  v_lshlrev_b32 {v('aBP2')}, 2, {t0}
  v_lshlrev_b32 {t0}, 2, {a3}
  v_lshl_add_u32 {t0}, {a5}, 1, {t0}
  v_and_b32 {t1}, 1, {a2}
  v_add_u32 {t0}, {t0}, {t1}
  v_lshlrev_b32 {t0}, 4, {t0}
  s_lshl_b32 s4, s3, 2
  v_add_u32 {v('aR32w')}, s4, {t0}
  v_and_b32 {t0}, 31, {lane}
  v_lshlrev_b32 {v('aR32r')}, 4, {t0}
  v_lshlrev_b32 {t2}, 2, {a1}
  v_lshl_add_u32 {t2}, {a5}, 1, {t2}
  v_add_u32 {t2}, {t2}, {t1}
  v_lshlrev_b32 {t2}, 4, {t2}
  v_add_u32 {v('aR64w')}, s4, {t2}
  v_lshlrev_b32 {v('aPD8')}, 5, {a2}
  v_lshlrev_b32 {v('aPD4')}, 4, {a2}
  v_and_b32 {t1}, 8, {lane}
  v_cmp_ne_u32 vcc, 0, {t1}
  v_mov_b32 {t2}, 128
  s_nop 0
  v_cndmask_b32 {v('aPD8cs')}, {v('aPD8')}, {t2}, vcc
  v_lshrrev_b32 {t1}, 2, {a1}
  v_lshlrev_b32 {t2}, 14, {t1}
  v_and_b32 {t3}, 3, {a1}
  v_lshl_add_u32 {t2}, {t3}, 5, {t2}
  v_and_b32 {t0}, 16, {lane}
  v_add_u32 {t2}, {t2}, {t0}
  s_lshl_b32 s4, s99, 4
  s_lshl_b32 s5, s3, 2
  s_add_u32 s4, s4, s5
  s_lshl_b32 s4, s4, 14
  s_lshl_b32 s5, s98, 7
  s_add_u32 s4, s4, s5
  s_add_u32 s4, s4, {WS_WP}
  v_add_u32 {v('aWPst')}, s4, {t2}
  v_mul_u32_u24 {t2}, 28672, {t1}
  v_lshl_add_u32 {t2}, {t3}, 5, {t2}
  v_add_u32 {t2}, {t2}, {t0}
  s_mul_i32 s4, s3, {8*28672}
  s_lshl_b32 s5, s55, 7
  s_add_u32 s4, s4, s5
  s_add_u32 s4, s4, {WS_DP}
  v_add_u32 {v('aDPst')}, s4, {t2}
  s_lshl_b32 s4, s101, 14
  s_lshl_b32 s5, s3, 12
  s_add_u32 s4, s4, s5
  s_add_u32 s4, s4, {WS_WP}
  v_add_u32 {v('aH3')}, s4, {v('l16')}
  v_lshrrev_b32 {t1}, 1, {a1}
  v_lshlrev_b32 {t1}, 13, {t1}
  v_and_b32 {t2}, 1, {a1}
  v_lshl_add_u32 {t1}, {t2}, 5, {t1}
  v_add_u32 {t1}, {t1}, {t0}
  v_lshl_add_u32 {t1}, {a5}, 6, {t1}
  s_lshl_b32 s4, s100, 5
  s_and_b32 s5, s3, 1
  s_lshl_b32 s5, s5, 4
  s_add_u32 s4, s4, s5
  s_lshl_b32 s4, s4, 13
  s_lshl_b32 s5, s101, 8
  s_add_u32 s4, s4, s5
  s_lshr_b32 s5, s3, 1
  s_lshl_b32 s5, s5, 7
  s_add_u32 s4, s4, s5
  s_add_u32 s4, s4, {WS_GP}
  v_add_u32 {v('aGPst')}, s4, {t1}
  s_lshl_b32 s4, s55, 13
  s_lshl_b32 s5, s3, 11
  s_add_u32 s4, s4, s5
  s_add_u32 s4, s4, {WS_GP}
  v_add_u32 {v('aH4')}, s4, {v('l16')}
  v_add_u32 {v('aH4st')}, {WS_ST}, {v('aR32r')}
  s_mul_i32 s4, s101, 28672
  s_mul_i32 s5, s3, 7168
  s_add_u32 s4, s4, s5
  s_add_u32 s4, s4, {WS_DP}
  v_add_u32 {v('aH5')}, s4, {v('l16')}
  v_and_b32 {t0}, 31, {lane}
  v_lshlrev_b32 {t0}, 1, {t0}
  s_lshl_b32 s4, s101, 6
  v_add_u32 {v('aOut')}, s4, {t0}
""")
        self.vmem(f"  buffer_load_ushort {v('xh')}, {v('aOut')}, {srd(S_X)}, 0 offen", "xh")
        e(f"""
  s_waitcnt lgkmcnt(0)
  s_add_u32 {sEPO}, {sEPO}, 1
  s_and_b32 {sTAG}, {sEPO}, 0xff
  v_mov_b32 {v('tag')}, {sTAG}
  s_mul_i32 {sTAG32}, {sTAG}, 0x01010101
  s_cmp_ge_u32 s3, 2
  s_cselect_b32 s{S_GU}, s46, s44
  s_cselect_b32 s{S_GU+1}, s47, s45
  s_cmp_eq_u32 {sACT}, 0
  s_cselect_b32 s{S_GU+2}, 0, 0x700000
  s_cselect_b32 s{S_WD+2}, 0, 0x700000
  s_mov_b32 s{S_GU+3}, 0x20000
  s_mov_b32 s{S_WD+3}, 0x20000
  s_mov_b32 {sC16K}, 16384
  s_mov_b32 {sC32K}, 32768
  s_mov_b32 {sC48K}, 49152
  s_mov_b32 {sC64K}, 65536
  s_mov_b32 {sC4K}, 4096
  s_mov_b32 {sCDP}, {4*28672}
  s_lshl_b32 s4, s98, 16
  s_lshl_b32 s5, s99, 10
  s_add_u32 s4, s4, s5
  s_lshl_b32 s5, s3, 8
  s_add_u32 {sWO}, s4, s5
  s_mul_i32 s4, s101, 229376
  s_lshl_b32 s5, s100, 10
  s_add_u32 s4, s4, s5
  s_and_b32 s5, s3, 1
  s_lshl_b32 s5, s5, 9
  s_add_u32 {sGUo}, s4, s5
  s_lshl_b32 s4, s55, 15
  s_lshl_b32 s5, s3, 9
  s_add_u32 {sWDo}, s4, s5
  ; K/V soffset
  s_lshl_b32 s6, s96, 24
  s_lshl_b32 s7, s97, 6
  s_lshl_b32 s5, s3, 4
  s_add_u32 s7, s7, s5
  s_add_u32 s7, s7, 61440
  s_lshl_b32 s7, s7, 8
  s_add_u32 s88, s6, s7
""")
        self.stamp("pre")
        self.wait("x")
        for d in range(8):
            e(f"  v_lshlrev_b32 {F(2*d)}, 16, {G(d)}\n  v_and_b32 {F(2*d+1)}, {sMHI}, {G(d)}")
        for i in range(0, 8, 2): e(f"  v_pk_add_f32 {v('G',i,2)}, {v('F',2*i,2)}, {v('F',2*i+2,2)}")
        e(f"  v_pk_add_f32 {v('G',0,2)}, {v('G',0,2)}, {v('G',2,2)}\n  v_pk_add_f32 {v('G',4,2)}, {v('G',4,2)}, {v('G',6,2)}")
        e(f"  v_pk_add_f32 {v('G',0,2)}, {v('G',0,2)}, {v('G',4,2)}\n  v_add_f32 {a1}, {G(0)}, {G(1)}")
        self.allred16("v_add_f32", [a1]); self.allred_rows("v_add_f32", [a1], [t0])
        e(f"  v_mul_f32 {a1}, 0x3a800000, {a1}      ; mean")
        e(f"  v_sub_f32 {t0}, {F(0)}, {a1}\n  v_mul_f32 {a2}, {t0}, {t0}")
        for i in range(1, 16):
            e(f"  v_sub_f32 {t0}, {F(i)}, {a1}\n  v_fmac_f32 {a2}, {t0}, {t0}")
        self.allred16("v_add_f32", [a2]); self.allred_rows("v_add_f32", [a2], [t0])
        e(f"  v_mul_f32 {a2}, 0x3a800000, {a2}      ; var")
        self.bf16r(a1, a1); self.bf16r(a2, a2)
        e(f"  v_add_f32 {a2}, 0x3727c5ac, {a2}")
        self.bf16r(a2, a2)
        e(f"  v_sqrt_f32 {a2}, {a2}\n  s_nop 0")
        self.bf16r(a2, a2)
        e(f"  v_rcp_f32 {a3}, {a2}\n  s_nop 0")
        for d in range(4):
            e(f"  v_lshlrev_b32 {F(2*d)}, 16, {v('P',d)}\n  v_and_b32 {F(2*d+1)}, {sMHI}, {v('P',d)}")
        for i in range(8):
            e(f"  v_sub_f32 {F(i)}, {F(i)}, {a1}")
            self.bf16r(F(i), F(i))
            e(f"  v_mul_f32 {t0}, {F(i)}, {a3}\n  v_fma_f32 {t1}, -{t0}, {a2}, {F(i)}\n  v_fma_f32 {F(i)}, {t1}, {a3}, {t0}")
        for d in range(4): e(f"  v_cvt_pk_bf16_f32 {v('P',d)}, {F(2*d)}, {F(2*d+1)}")
        self.stamp("ln1")
        for u in range(4):
            self.vmem(f"  buffer_load_dwordx4 {v('K',4*u,4)}, {v('offK')}, {srd(S_K)}, s88 offen offset:{64*u} nt", "k")
        e(f"  s_lshl_b32 s5, s3, 12")
        for t in range(4):
            e(f"  s_add_u32 s6, s5, {L_V + 1024*t}\n  s_mov_b32 m0, s6\n  s_add_u32 s7, s88, {1024*t}")
            self.vmem(f"  buffer_load_dwordx4 {v('offVa') if t < 2 else v('offVb')}, {srd(S_V)}, s7 offen nt lds", "v")
        self.prefetch("start")
        if self.setprio: e(f"  s_setprio {self.setprio}")
        self.gemv("WQ", 8, 1, "wq")
        self.stamp("p1mfma")
        e(f"  ds_write_b128 {v('aRED1w')}, {v('D',0,4)}\n  s_waitcnt lgkmcnt(0)\n  s_barrier")
        lab = self.label("p1skip")
        e(f"""
  s_cmp_lg_u32 s3, 0
  s_cbranch_scc1 {lab}
  ds_read_b128 {v('G',0,4)}, {v('aRED1r')} offset:{L_RED}
  ds_read_b128 {v('G',4,4)}, {v('aRED1r')} offset:{L_RED+256}
  s_waitcnt lgkmcnt(0)
  v_pk_add_f32 {v('G',0,2)}, {v('G',0,2)}, {v('G',4,2)}
  v_pk_add_f32 {v('G',2,2)}, {v('G',2,2)}, {v('G',6,2)}
""")
        self.allred_rows("v_add_f32", [G(0), G(1), G(2), G(3)], [F(0), F(1), F(2), F(3)])
        self.tag('G', 0, rn=True)
        e(f"  s_mov_b64 exec, 0xffff\n  buffer_store_dwordx4 {v('G',0,4)}, {v('aQst')}, {srd(S_WS)}, 0 offen sc1\n  s_mov_b64 exec, -1\n{lab}:")
        self.stamp("qpub")
        self.prefetch("after_q")
        so = ["0", sC16K, sC32K, sC48K]
        loads = [f"  buffer_load_dwordx4 {v('G',4*k,4)}, {v('aH1')}, {srd(S_WS)}, {so[k]} offen sc1" for k in range(4)]
        self.poll("hop1", loads, [('G',4*k) for k in range(4)], lambda: self.prefetch("in_hop1"), xor=True)
        self.stamp("hop1")
        self.pk_sum('G', [0, 1, 2, 3])
        e(f"""
  v_cvt_pk_bf16_f32 {G(0)}, {G(0)}, {G(1)}
  v_cvt_pk_bf16_f32 {G(1)}, {G(2)}, {G(3)}
  ds_write_b64 {v('aQw')}, {v('G',0,2)} offset:{L_Q}
  s_waitcnt lgkmcnt(0)
  s_barrier
""")
        for u in range(4): e(f"  ds_read_b128 {v('G',4*u,4)}, {v('aQr')} offset:{L_Q+64*u}")
        self.wait("k", " lgkmcnt(0)")
        D0 = v('D',0,4)
        for u in range(4):
            e(f"  v_mfma_f32_16x16x32_bf16 {D0}, {v('K',4*u,4)}, {v('G',4*u,4)}, {'0' if u == 0 else D0}")
        e("  s_nop 7")
        D = lambda i: v('D', i)
        e(f"""
  v_cvt_pk_bf16_f32 {t0}, {D(0)}, {D(1)}
  v_cvt_pk_bf16_f32 {t1}, {D(2)}, {D(3)}
  v_lshlrev_b32 {D(0)}, 16, {t0}
  v_and_b32 {D(1)}, {sMHI}, {t0}
  v_lshlrev_b32 {D(2)}, 16, {t1}
  v_and_b32 {D(3)}, {sMHI}, {t1}
  v_pk_mul_f32 {v('D',0,2)}, {v('D',0,2)}, {sSCALE}
  v_pk_mul_f32 {v('D',2,2)}, {v('D',2,2)}, {sSCALE}
  v_cvt_pk_bf16_f32 {t0}, {D(0)}, {D(1)}
  v_cvt_pk_bf16_f32 {t1}, {D(2)}, {D(3)}
  v_lshlrev_b32 {D(0)}, 16, {t0}
  v_and_b32 {D(1)}, {sMHI}, {t0}
  v_lshlrev_b32 {D(2)}, 16, {t1}
  v_and_b32 {D(3)}, {sMHI}, {t1}
  v_max_f32 {a1}, {D(0)}, {D(1)}
  v_max3_f32 {a1}, {D(2)}, {D(3)}, {a1}
""")
        self.allred_rows("v_max_f32", [a1], [t0])
        e(f"""
  ds_write_b32 {v('aMLw')}, {a1} offset:{L_ML}
  s_waitcnt lgkmcnt(0)
  s_barrier
  ds_read_b128 {v('G',0,4)}, {v('aMLr')} offset:{L_ML}
  s_waitcnt lgkmcnt(0)
  v_max_f32 {a1}, {G(0)}, {G(1)}
  v_max3_f32 {a1}, {G(2)}, {G(3)}, {a1}        ; M[head]
  v_mul_f32 {a2}, 0x3fb8aa3b, {a1}
  v_mov_b32 {t0}, 0x3fb8aa3b
""")
        for r in range(4): e(f"  v_fma_f32 {D(r)}, {D(r)}, {t0}, -{a2}")
        for r in range(4): e(f"  v_exp_f32 {D(r)}, {D(r)}")
        e(f"""
  s_nop 0
  v_cvt_pk_bf16_f32 {G(0)}, {D(0)}, {D(1)}
  v_cvt_pk_bf16_f32 {G(1)}, {D(2)}, {D(3)}
  ds_write_b64 {v('aPw')}, {v('G',0,2)}
""")
        for d in range(4): e(f"  v_mov_b32 {v('A',d)}, {v('ones')}")
        self.wait("v", " lgkmcnt(0)")
        e(f"""
  s_barrier
  ds_read_b128 {v('G',0,4)}, {v('aPr')} offset:{L_P}
  ds_read_b128 {v('G',4,4)}, {v('aPr')} offset:{L_P+64}
""")
        for a, ad in ((0, v('aV0')), (1, v('aV1'))):
            for u in range(2):
                for hh in range(2):
                    e(f"  ds_read_b64_tr_b16 {v('F', 8*a+4*u+2*hh, 2)}, {ad} offset:{L_V + 8192*u + 1024*hh}")
        e("  s_waitcnt lgkmcnt(0)")
        DL = v('DL',0,4)
        e(f"  v_mfma_f32_16x16x32_bf16 {DL}, {v('A',0,4)}, {v('G',0,4)}, 0")
        for a in range(2):
            e(f"  v_mfma_f32_16x16x32_bf16 {v('D',4*a,4)}, {v('F',8*a,4)}, {v('G',0,4)}, 0")
        e(f"  v_mfma_f32_16x16x32_bf16 {DL}, {v('A',0,4)}, {v('G',4,4)}, {DL}")
        for a in range(2):
            e(f"  v_mfma_f32_16x16x32_bf16 {v('D',4*a,4)}, {v('F',8*a+4,4)}, {v('G',4,4)}, {v('D',4*a,4)}")
        e(f"""
  v_mov_b32 {v('GL',0)}, {a1}
  v_mov_b32 {v('GL',2)}, {a1}
  s_nop 4
  v_mov_b32 {v('GL',1)}, {v('DL',0)}
  v_mov_b32 {v('GL',3)}, {v('DL',0)}
""")
        self.tag('D', 0, 8)
        e(f"  s_mov_b32 exec_lo, 0x00ff00ff\n  s_mov_b32 exec_hi, 0x00ff00ff")
        self.vmem(f"  buffer_store_dwordx4 {v('D',0,4)}, {v('aOPst')}, {srd(S_WS)}, 0 offen sc1", "st")
        self.vmem(f"  buffer_store_dwordx4 {v('D',4,4)}, {v('aOPst')}, {srd(S_WS)}, 0 offen offset:64 sc1", "st")
        lab = self.label("mlskip")
        e(f"  s_mov_b64 exec, 0xff\n  s_cmp_lg_u32 s3, 0\n  s_cbranch_scc1 {lab}")
        self.tag('GL', 0)
        e(f"  buffer_store_dwordx4 {v('GL',0,4)}, {v('aMLst')}, {srd(S_WS)}, 0 offen sc1")
        e(f"{lab}:\n  s_mov_b64 exec, -1")
        self.stamp("opub")
        self.prefetch("after_o")
        loads = [f"  buffer_load_dwordx4 {v('GL',0,4)}, {v('aH2ml')}, {srd(S_WS)}, 0 offen sc1",
                 f"  buffer_load_dwordx4 {v('G',0,4)}, {v('aH2')}, {srd(S_WS)}, 0 offen sc1",
                 f"  buffer_load_dwordx4 {v('G',4,4)}, {v('aH2')}, {srd(S_WS)}, 0 offen offset:1024 sc1"]
        self.poll("hop2", loads, [('GL',0), ('G',0), ('G',4)], lambda: self.prefetch("in_hop2"))
        self.stamp("hop2")
        GL = lambda i: v('GL', i)
        e(f"""
  v_and_b32 {GL(0)}, {sMHI}, {GL(0)}
  ds_bpermute_b32 {a4}, {v('aBP2')}, {GL(0)}
  ds_bpermute_b32 {a5}, {v('aBP2')}, {GL(0)} offset:32
  v_mov_b32 {a1}, {GL(0)}
""")
        self.allred16("v_max_f32", [a1]); self.allred_rows("v_max_f32", [a1], [t0])
        e(f"""
  v_mov_b32 {t2}, 0x3fb8aa3b
  v_mul_f32 {a1}, {a1}, {t2}             ; M*c
  s_waitcnt lgkmcnt(0)
  v_fma_f32 {a2}, {GL(0)}, {t2}, -{a1}
  v_fma_f32 {a4}, {a4}, {t2}, -{a1}
  v_fma_f32 {a5}, {a5}, {t2}, -{a1}
  v_exp_f32 {a2}, {a2}
  v_exp_f32 {a4}, {a4}
  v_exp_f32 {a5}, {a5}
  v_mul_f32 {a3}, {a2}, {GL(1)}          ; w_s * l_s
""")
        for i in range(0, 4, 2):
            e(f"  v_pk_mul_f32 {v('G',i,2)}, {v('G',i,2)}, {v('a45',0,2)} op_sel_hi:[1,0]")
        for i in range(0, 4, 2):
            e(f"  v_pk_fma_f32 {v('G',i,2)}, {v('G',4+i,2)}, {v('a45',0,2)}, {v('G',i,2)} op_sel:[0,1,0] op_sel_hi:[1,1,1]")
        dpp = lambda m: f"  v_add_f32_dpp {a3}, {a3}, {a3} {m} row_mask:0xf bank_mask:0xf"
        e(dpp(self.DPP16[0]))
        e(f"""
  s_nop 0
  v_permlane32_swap_b32 {G(0)}, {G(2)}
  v_permlane32_swap_b32 {G(1)}, {G(3)}
{dpp(self.DPP16[1])}
  v_add_f32 {G(0)}, {G(0)}, {G(2)}
  v_add_f32 {G(1)}, {G(1)}, {G(3)}
{dpp(self.DPP16[2])}
  s_nop 0
  v_permlane16_swap_b32 {G(0)}, {G(1)}
  v_add_f32 {G(0)}, {G(0)}, {G(1)}
{dpp(self.DPP16[3])}
  s_nop 0
  v_add_f32_dpp {G(0)}, {G(0)}, {G(0)} row_ror:8 row_mask:0xf bank_mask:0xf
""")
        fill = []
        for k in (16, 32):
            fill.append(f"  v_mov_b32 {t0}, {a3}\n  s_nop 1\n  v_permlane{k}_swap_b32 {a3}, {t0}\n  v_add_f32 {a3}, {a3}, {t0}")
        fill.append(f"  v_rcp_f32 {a3}, {a3}")
        self.reduce32_tail(L_RED, fill="\n".join(fill))
        e(f"  v_mul_f32 {a1}, {G(0)}, {a3}")
        self.distribute(a1, v('aPD8'), 4)
        self.prefetch_until("wo")
        self.prefetch("pre_p3")
        self.gemv("WO", 8, 1, "wo")
        self.tag('D', 0)
        e("  s_mov_b32 exec_hi, 0")
        self.vmem(f"  buffer_store_dwordx4 {v('D',0,4)}, {v('aWPst')}, {srd(S_WS)}, 0 offen sc1", "st")
        e("  s_mov_b64 exec, -1")
        self.stamp("wpub")
        self.prefetch("after_w")
        loads = [f"  buffer_load_dwordx4 {v('G',4*k,4)}, {v('aH3')}, {srd(S_WS)}, 0 offen offset:{1024*k} sc1" for k in range(4)]
        self.poll("hop3", loads, [('G',4*k) for k in range(4)], lambda: self.prefetch("in_hop3"))
        self.stamp("hop3")
        self.pk_sum('G', [0, 1, 2, 3])
        self.scatter4([G(0), G(1), G(2), G(3)])
        e(f"  s_nop 1\n  v_add_f32_dpp {G(0)}, {G(0)}, {G(0)} row_ror:8 row_mask:0xf bank_mask:0xf")
        self.reduce32_tail(L_RED2, fill=f"  v_lshlrev_b32 {v('xh')}, 16, {v('xh')}")
        self.bf16r(a1, G(0))
        e(f"  v_add_f32 {a1}, {a1}, {v('xh')}")
        self.bf16r(a1, a1)
        e(f"  s_cmp_eq_u32 {sACT}, 0\n  s_cbranch_scc1 L_SPARE")
        vm_at_branch = list(self.vm)
        self.distribute(a1, v('aPD8cs'), 4, cs=True)
        self.prefetch_until("gu")
        self.prefetch("pre_p4")
        self.gemv("GU", 8, 2, "gu")
        self.tag('D', 0, 8)
        self.vmem(f"  buffer_store_dwordx4 {v('D',0,4)}, {v('aGPst')}, {srd(S_WS)}, 0 offen sc1", "st")
        self.vmem(f"  buffer_store_dwordx4 {v('D',4,4)}, {v('aGPst')}, {srd(S_WS)}, {sC64K} offen sc1", "st")
        self.stamp("gpub")
        self.prefetch("after_g")
        loads = [f"  buffer_load_dwordx4 {v('GL',0,4)}, {v('aH4st')}, {srd(S_WS)}, 0 offen sc1",
                 f"  buffer_load_dwordx4 {v('G',0,4)}, {v('aH4')}, {srd(S_WS)}, 0 offen sc1",
                 f"  buffer_load_dwordx4 {v('G',4,4)}, {v('aH4')}, {srd(S_WS)}, 0 offen offset:1024 sc1"]
        self.poll("hop4", loads, [('GL',0), ('G',0), ('G',4)], lambda: self.prefetch("in_hop4"))
        self.stamp("hop4")
        self.pk_sum('G', [0, 1])
        self.scatter4([G(0), G(1), G(2), G(3)])
        e(f"  ds_write_b32 {v('aR64w')}, {G(0)} offset:{L_RED}")
        self.allred16("v_add_f32", [GL(0), GL(1)])
        self.allred_rows("v_add_f32", [GL(0), GL(1)], [t0, t1], which=(16,))
        e(f"""
  v_mul_f32 {a2}, 0x3a800000, {GL(0)}    ; mean
  v_mul_f32 {a3}, 0x3a800000, {GL(1)}    ; E[h^2]
  v_fma_f32 {a3}, -{a2}, {a2}, {a3}      ; var
  v_max_f32 {a3}, 0, {a3}
  v_cvt_pk_bf16_f32 {t0}, {a2}, {a3}
  v_lshlrev_b32 {a2}, 16, {t0}           ; bf16(mean)
  v_and_b32 {a3}, {sMHI}, {t0}           ; bf16(var)
  v_add_f32 {a3}, 0x3727c5ac, {a3}
""")
        self.bf16r(a3, a3)
        e(f"  v_sqrt_f32 {a3}, {a3}\n  s_waitcnt lgkmcnt(0)\n  s_barrier\n  ds_read_b128 {v('G',0,4)}, {v('l16')} offset:{L_RED}")
        self.bf16r(a3, a3)
        e(f"""
  v_rcp_f32 {a4}, {a3}
  s_waitcnt lgkmcnt(0)
  v_pk_add_f32 {v('G',0,2)}, {v('G',0,2)}, {v('G',2,2)}
  v_add_f32 {a1}, {G(0)}, {G(1)}
  v_mov_b32 {a5}, {a1}
  s_nop 1
  v_permlane16_swap_b32 {a1}, {a5}
  v_fma_f32 {a1}, -{a2}, {a5}, {a1}
  v_mul_f32 {t0}, {a1}, {a4}
  v_fma_f32 {t1}, -{t0}, {a3}, {a1}
  v_fma_f32 {a1}, {t1}, {a4}, {t0}       ; / std
""")
        self.bf16r(a1, a1)
        e(f"""
  v_mov_b32 {a5}, {a1}
  s_nop 1
  v_permlane32_swap_b32 {a1}, {a5}
  v_max_f32 {a1}, 0, {a1}
  v_mul_f32 {a1}, {a1}, {a5}
""")
        self.distribute(a1, v('aPD4'), 2)
        self.prefetch_until("wd")
        self.gemv("WD", 4, 2, "wd")
        self.tag('D', 0, 8)
        e("  s_mov_b32 exec_hi, 0")
        self.vmem(f"  buffer_store_dwordx4 {v('D',0,4)}, {v('aDPst')}, {srd(S_WS)}, 0 offen sc1", "st")
        self.vmem(f"  buffer_store_dwordx4 {v('D',4,4)}, {v('aDPst')}, {srd(S_WS)}, {sCDP} offen sc1", "st")
        self.stamp("dpub")
        if self.prof:
            k = self.nstamp
            e(f"  s_memrealtime s[{64+2*k}:{65+2*k}]\n  s_memrealtime s[{66+2*k}:{67+2*k}]")
            e("  s_branch L_PROF")
        else:
            e("  s_endpgm")
        e("L_SPARE:")
        self.vm = vm_at_branch
        e(f"  v_mov_b32 {v('hres')}, {a1}\n  v_mov_b32 {GL(0)}, {a1}\n  v_mul_f32 {GL(1)}, {a1}, {a1}")
        self.allred16("v_add_f32", [GL(0), GL(1)])
        self.allred_rows("v_add_f32", [GL(0), GL(1)], [t0, t1], which=(16,))
        e(f"  v_mov_b32 {GL(2)}, {GL(0)}\n  v_mov_b32 {GL(3)}, {GL(1)}")
        self.tag('GL', 0)
        lab = self.label("stskip")
        e(f"""
  s_cmp_lg_u32 s3, 0
  s_cbranch_scc1 {lab}
  s_lshl_b32 s4, s101, 4
  s_add_u32 s4, s4, {WS_ST}
  s_mov_b64 exec, 1
  buffer_store_dwordx4 {v('GL',0,4)}, {v('zero')}, {srd(S_WS)}, s4 offen sc1
  s_mov_b64 exec, -1
{lab}:
""")
        if self.prof:
            for k in range(self.stamps.index("gpub"), self.stamps.index("dpub")+1):
                e(f"  s_memrealtime s[{64+2*k}:{65+2*k}]")
        e("  s_waitcnt vmcnt(0)")
        g5 = self.gates.get("pre5")
        self.vm = []
        loads = [f"  buffer_load_dwordx4 {v('G',24,4)}, {v('aH5')}, {srd(S_WS)}, {sC4K} offen offset:2048 sc1"]
        sr = self.sleep_retry; self.sleep_retry = self.gates.get("pre5sleep", 4)
        self.poll("pre5", loads, [('G',24)])
        self.sleep_retry = sr
        loads = [f"  buffer_load_dwordx4 {v('G',4*k,4)}, {v('aH5')}, {srd(S_WS)}, {'0' if k < 4 else sC4K} offen offset:{1024*(k%4)} sc1" for k in range(6)]
        self.poll("hop5", loads, [('G',4*k) for k in range(6)])
        self.stamp("hop5")
        self.pk_sum('G', list(range(7)))
        self.scatter4([G(0), G(1), G(2), G(3)])
        e(f"  s_nop 1\n  v_add_f32_dpp {G(0)}, {G(0)}, {G(0)} row_ror:8 row_mask:0xf bank_mask:0xf")
        self.reduce32_tail(L_RED)
        self.bf16r(a1, G(0))
        e(f"""
  v_add_f32 {a1}, {a1}, {v('hres')}
  s_nop 1
  v_mov_b32_dpp {t0}, {a1} quad_perm:[1,1,3,3] row_mask:0xf bank_mask:0xf
  v_cvt_pk_bf16_f32 {t0}, {a1}, {t0}
  s_cmp_lg_u32 s3, 0
  s_cbranch_scc1 L_FIN
  s_mov_b32 exec_lo, 0x55555555
  s_mov_b32 exec_hi, 0
  buffer_store_dword {t0}, {v('aOut')}, {srd(S_OUT)}, 0 offen
  s_cmp_lg_u32 s101, 0
  s_cbranch_scc1 L_FIN
  s_mov_b64 exec, 1
  v_mov_b32 {t1}, {sEPO}
  buffer_store_dword {t1}, {v('zero')}, {srd(S_WS)}, 0 offen sc1
L_FIN:
""")
        self.stamp("end")
        if self.prof:
            e(f"""
L_PROF:
  s_waitcnt lgkmcnt(0)
  s_lshl_b32 s4, s2, 2
  s_add_u32 s4, s4, s3
  s_lshl_b32 s4, s4, 7
  s_add_u32 s4, s4, {WS_PROF}
  s_mov_b64 exec, 1
  v_mov_b32 {t1}, s62
  buffer_store_dword {t1}, {v('zero')}, {srd(S_WS)}, s4 offen
""")
            for k in range(self.nstamp):
                e(f"  s_nop 1\n  v_mov_b32 {t1}, s{64+2*k}\n  buffer_store_dword {t1}, {v('zero')}, {srd(S_WS)}, s4 offen offset:{4+4*k}")
            e(f"  s_mov_b64 exec, 0xff\n  v_lshlrev_b32 {t0}, 2, {lane}\n  buffer_store_dword {v('prf')}, {t0}, {srd(S_WS)}, s4 offen offset:64")
        if self.prof and self.dbgwg is not None:
            e(f"""
  s_cmp_lg_u32 s2, {self.dbgwg}
  s_cbranch_scc1 L_END
  s_cmp_lg_u32 s3, 0
  s_cbranch_scc1 L_END
  s_load_dwordx2 s[4:5], s[0:1], 80
  s_mov_b32 s6, 256
  s_mov_b32 s7, 0x20000
  s_waitcnt lgkmcnt(0)
  s_mov_b64 exec, 1
""")
            e(f"  v_mov_b32 {t1}, s62\n  buffer_store_dword {t1}, {v('zero')}, s[4:7], 0 offen")
            for k in range(self.nstamp):
                e(f"  s_nop 1\n  s_sub_u32 s3, s{64+2*k}, s62\n  v_mov_b32 {t1}, s3\n  buffer_store_dword {t1}, {v('zero')}, s[4:7], 0 offen offset:{4+4*k}")
        e("L_END:\n  s_endpgm")
        e("L_CODE_END:")
        return self

def emit(path, **kw):
    g = Gen(**kw).build()
    body = "\n".join(g.l)
    nv = (g.vnext + 3)//4*4
    tot = nv + g.anext
    txt = HDR + f"; @launch grid=(256,1,1) block=(256,1,1) lds={LDS_BYTES}\n"
    txt += f""".amdgcn_target "amdgcn-amd-amdhsa--gfx950"
.text
.globl {KNAME}
.p2align 8
.type {KNAME},@function
.set CODE_BYTES, L_CODE_END - L_PCREF
{body}
.section .rodata,"a"
.p2align 6
.amdhsa_kernel {KNAME}
  .amdhsa_next_free_vgpr {tot}
  .amdhsa_next_free_sgpr 102
  .amdhsa_accum_offset {nv}
  .amdhsa_group_segment_fixed_size 0
  .amdhsa_kernarg_size 96
  .amdhsa_user_sgpr_count 2
  .amdhsa_user_sgpr_kernarg_segment_ptr 1
  .amdhsa_system_sgpr_workgroup_id_x 1
.end_amdhsa_kernel
"""
    if not kw.get("codepf", True): txt = txt.replace(".set CODE_BYTES, L_CODE_END - L_PCREF\n", "")
    open(path, "w").write(txt)
    return g
DEFAULT_SCHED = dict(start=0, after_q=2, in_hop1=6, after_o=4, in_hop2=6, pre_p3=0, after_w=4, in_hop3=6, pre_p4=2, after_g=2, in_hop4=0)
DEFAULT_GATES = dict(hop1=12, hop2=12, hop3=12, hop4=12)
if __name__ == "__main__":
    import json
    kw = json.loads(sys.argv[2]) if len(sys.argv) > 2 else {}
    kw.setdefault("sched", DEFAULT_SCHED); kw.setdefault("gates", DEFAULT_GATES)
    g = emit(sys.argv[1], **kw)
    print("vgprs", g.vnext, "agprs", g.anext, "lines", len(g.l), "stamps", g.stamps)
```
